```python
import torch

def _softmax(x, axis=-1):
    return torch.softmax(x, dim=axis)

def _gelu(x):
    return torch.nn.functional.gelu(x, approximate='tanh')

def _silu(x):
    return torch.nn.functional.silu(x)

def _sigmoid(x):
    return torch.sigmoid(x)

def _layernorm(x, axis=-1, eps=1e-05):
    m = x.mean(dim=axis, keepdim=True)
    v = x.var(dim=axis, keepdim=True, unbiased=False)
    return (x - m) / torch.sqrt(v + eps)

def _scatter_add(tgt, idx, src, axis=0):
    return tgt.clone().index_add_(axis, idx, src)

def _segment_sum(src, seg, n):
    out = torch.zeros((n,) + src.shape[1:], dtype=src.dtype)
    return out.index_add_(0, seg, src)

def _pad(x, pw):
    flat = tuple((v for pair in reversed(pw) for v in pair))
    return torch.nn.functional.pad(x, flat)
kernel_name = 'standalone__molecular_angular_painn__graph'

def setup_inputs():

    _w = lambda a: (lambda t: t.to(torch.bfloat16) if t.is_floating_point() else t)(torch.as_tensor(a))
    N, deg, D = (12500, 32, 128)
    n_rbf = max(16, 4)
    E = N * deg
    cutoff = 5.0
    freqs = (torch.arange(1, n_rbf + 1) * torch.pi / cutoff).to(float)
    return {'sv': _w((lambda *s: torch.randn(*s, dtype=torch.bfloat16) * 0.4)(N, 4, D) * 0.3), 'pos': _w((lambda *s: torch.randn(*s, dtype=torch.bfloat16) * 1.6)(N, 3) * 1.2), 'src': _w((lambda lo, hi, *s: torch.randint(lo, hi, s))(0, N, E).to(torch.int64)), 'dst': _w((lambda lo, hi, *s: torch.randint(lo, hi, s))(0, N, E).to(torch.int64)), 'freqs': _w(freqs), 'w_phi1': _w((lambda *s: torch.randn(*s, dtype=torch.bfloat16) * 3.2)(D, D) / D ** 0.5), 'w_phi2': _w((lambda *s: torch.randn(*s, dtype=torch.bfloat16) * 1.6)(D, 3 * D) / D ** 0.5), 'w_rbf': _w((lambda *s: torch.randn(*s, dtype=torch.bfloat16) * 1.6)(n_rbf, 3 * D) / n_rbf ** 0.5)}

def reference(sv, pos, src, dst, freqs, w_phi1, w_phi2, w_rbf):
    N, _, D = sv.shape
    E = src.shape[0]
    PI, cutoff = (3.141592653589793, 5.0)
    s, v = (sv[:, 0, :].clone(), sv[:, 1:, :].clone())
    r_vec = pos[src] - pos[dst]
    d = torch.sqrt((r_vec * r_vec).sum(-1) + 1e-08)
    r_hat = r_vec / d[:, None]
    rbf = torch.sin(d[:, None] * freqs[None, :]) / d[:, None]
    fcut = 0.5 * (torch.cos(PI * d / cutoff) + 1.0)
    fcut = torch.where(d < cutoff, fcut, 0.0 * d)
    Wf = rbf @ w_rbf * fcut[:, None]
    phi = (_silu(s @ w_phi1) @ w_phi2)[src]
    m = phi * Wf
    m_s, m_vv, m_vr = (m[:, :D].clone(), m[:, D:2 * D].clone(), m[:, 2 * D:].clone())
    ds = _segment_sum(m_s, dst, N)
    dv_e = m_vv[:, None, :] * v[src] + m_vr[:, None, :] * r_hat[:, :, None]
    dv = _segment_sum(dv_e.reshape(E, 3 * D), dst, N).reshape(N, 3, D)
    return sv + torch.concatenate([ds[:, None, :], dv], axis=1)
```

```python
import re

class Asm:
    def __init__(self):
        self.lines = []
        self._lbl = 0
    def __call__(self, s):
        for ln in s.strip().split("\n"):
            ln = ln.strip()
            if ln:
                self.lines.append(ln)
    def label(self, name):
        self.lines.append(name + ":")
    def newlabel(self, base="L"):
        self._lbl += 1
        return f"{base}_{self._lbl}"
    def nop(self, n):
        while n > 0:
            k = min(n, 16)
            self(f"s_nop {k-1}")
            n -= k
    def text(self):
        out = []
        for ln in self.lines:
            if ln.endswith(":") or ln.startswith("."):
                out.append(ln)
            else:
                out.append("    " + ln)
        return "\n".join(out) + "\n"

def v(i, n=1):
    return f"v{i}" if n == 1 else f"v[{i}:{i+n-1}]"
def s(i, n=1):
    return f"s{i}" if n == 1 else f"s[{i}:{i+n-1}]"

_REG = re.compile(r"\b([vs])(\d+)\b|\b([vs])\[(\d+):(\d+)\]|\b(vcc|exec|m0|scc)\b")
def regs_of(tok):
    out = set()
    for m in _REG.finditer(tok):
        if m.group(1):
            out.add((m.group(1), int(m.group(2))))
        elif m.group(3):
            for r in range(int(m.group(4)), int(m.group(5)) + 1):
                out.add((m.group(3), r))
        else:
            out.add((m.group(6), 0))
    return out

TRANS = ("v_exp_f32", "v_log_f32", "v_rcp_f32", "v_rsq_f32", "v_sqrt_f32", "v_sin_f32", "v_cos_f32")
class Ins:
    def __init__(self, text):
        self.text = text
        t = text.split(";")[0].strip()
        parts = t.split(None, 1)
        self.op = parts[0]
        rest = parts[1] if len(parts) > 1 else ""
        ops = [x.strip() for x in rest.split(",")] if rest else []
        self.ops = ops
        op = self.op
        self.valu = op.startswith("v_") and not op.startswith("v_mfma")
        self.mfma = op.startswith("v_mfma")
        self.vmem = op.startswith("buffer_") or op.startswith("global_")
        self.ds = op.startswith("ds_")
        self.salu = op.startswith("s_")
        self.dpp = "_dpp" in op or "row_" in rest or "quad_perm" in rest
        self.trans = any(op.startswith(x) for x in TRANS)
        self.swap = op.startswith("v_permlane")
        self.w = set(); self.r = set()
        self.srcc = set(); self.srcab = set()
        self.states = 1
        if op == "s_nop":
            self.states = int(ops[0], 0) + 1
        R = [regs_of(o.split(" ")[0] if not o.startswith(("v[", "s[")) else o.split(" ")[0]) for o in ops]
        if self.mfma:
            self.w = R[0]; self.srcab = R[1] | R[2]; self.srcc = R[3]; self.r = self.srcab | self.srcc
            self.passes = 8 if "32x32" in op else 4
        elif self.valu:
            if op.startswith("v_cmp"):
                self.w = R[0]; self.r = set().union(*R[1:])
            elif self.swap:
                self.w = R[0] | R[1]; self.r = R[0] | R[1]
            elif op.startswith(("v_add_co", "v_sub_co", "v_addc_co", "v_subb_co")):
                self.w = R[0] | R[1]; self.r = set().union(*R[2:])
            else:
                self.w = R[0]; self.r = set().union(*R[1:]) if len(R) > 1 else set()
                if op.startswith(("v_fmac", "v_dot2c")) or self.dpp or "v_writelane" in op:
                    self.r |= R[0]
                if op.startswith("v_cndmask") and len(ops) == 3:
                    self.r |= {("vcc", 0)}
        elif self.vmem:
            lds = rest.strip().endswith(" lds") or " lds " in rest
            self.lds = lds
            if "load" in op and not lds:
                self.w = R[0]; self.r = set().union(*R[1:])
            else:
                self.r = set().union(*R)
                self.store_data = R[0] if "store" in op else set()
                if lds: self.r |= {("m0", 0)}
        elif self.ds:
            if op.startswith(("ds_read", "ds_bpermute", "ds_permute", "ds_swizzle")) or "_rtn" in op:
                self.w = R[0]; self.r = set().union(*R[1:])
            else:
                self.r = set().union(*R)
        elif self.salu:
            if op.startswith(("s_cmp", "s_cbranch", "s_branch", "s_waitcnt", "s_barrier", "s_nop", "s_endpgm", "s_setprio", "s_bitcmp")):
                self.r = set().union(*R) if R else set()
            else:
                self.w = R[0] if R else set(); self.r = set().union(*R[1:]) if len(R) > 1 else set()
                if "saveexec" in op: self.w |= {("exec", 0)}

def vg(x): return {r for r in x if r[0] == "v"}
def sg(x): return {r for r in x if r[0] in ("s", "vcc")}

def need(p, c):
    n = 0
    if p.valu:
        wv = vg(p.w); ws = sg(p.w)
        if wv:
            if c.valu and c.dpp and (wv & regs_of(c.ops[1].split(" ")[0])): n = max(n, 2)
            if c.swap and (wv & c.r): n = max(n, 2)
            if c.mfma and (wv & c.r): n = max(n, 2)
            if c.op.startswith(("v_readlane", "v_readfirstlane")) and (wv & c.r): n = max(n, 1)
            if p.trans and c.valu and not c.trans and (wv & c.r): n = max(n, 1)
            if p.trans and (c.vmem or c.ds) and (wv & c.r): n = max(n, 1)
        if ws:
            if c.vmem and (ws & c.r): n = max(n, 5)
            if c.valu and (ws & c.r):
                n = max(n, 4 if c.op.startswith(("v_readlane", "v_writelane")) else 2)
    if p.mfma:
        k = {4: 8, 8: 12}[p.passes]
        if c.mfma:
            if p.w & c.srcab: n = max(n, k)
            if p.w & c.srcc and not (p.w == c.srcc and p.passes == c.passes): n = max(n, k - 2)
            if (p.w & c.w) and not (p.w == c.srcc): n = max(n, k - 2)
        elif c.valu or c.vmem or c.ds:
            if p.w & (c.r | c.w): n = max(n, k)
            if c.valu and (p.srcc & c.w): n = max(n, {4: 3, 8: 7}[p.passes])
    if p.vmem and getattr(p, "store_data", None) and ("x3" in p.op or "x4" in p.op):
        if (c.valu or c.mfma) and (p.store_data & c.w): n = max(n, 2)
        elif p.store_data & c.w: n = max(n, 1)
    if p.salu and ("m0", 0) in p.w and c.vmem and getattr(c, "lds", False): n = max(n, 1)
    return n

def check(lines):
    ins = []; labels = {}
    for ln in lines:
        if ln.startswith(".") or ln.startswith(";"): continue
        if ln.endswith(":"):
            labels[ln[:-1]] = len(ins); continue
        ins.append(Ins(ln))
    def succ(i):
        I = ins[i]
        if I.op == "s_endpgm": return []
        if I.op == "s_branch": return [labels[I.ops[0]]]
        if I.op.startswith("s_cbranch"): return [i + 1, labels[I.ops[0]]]
        return [i + 1]
    errs = []
    for i, p in enumerate(ins):
        if not (p.valu or p.mfma or p.vmem or p.salu): continue
        maxd = 12 if p.mfma else 5
        seen = {}
        stack = [(j, 0) for j in succ(i)]
        while stack:
            j, d = stack.pop()
            if j >= len(ins) or d >= maxd: continue
            if j in seen and seen[j] <= d: continue
            seen[j] = d
            c = ins[j]
            nn = need(p, c)
            if nn > d:
                errs.append(f"hazard: need {nn} have {d}: [{i}] {p.text}  ->  [{j}] {c.text}")
            for k in succ(j): stack.append((k, d + c.states))
    return errs

def maxregs(lines):
    mv = ms = -1
    for ln in lines:
        if ln.startswith(".") or ln.endswith(":"): continue
        for k, r in regs_of(ln.split(";")[0]):
            if k == "v": mv = max(mv, r)
            if k == "s": ms = max(ms, r)
    return mv + 1, ms + 1
```

```python
N=12500; E=400000
NB=196; NBIN=64; NQ=49
PW=250; EPW=1600; NPW=50
TROW=256; TSZ=N*TROW
WS_TV=0; WS_TS=4*TSZ
WS_LUT=16000000; LUT_ROWS=2016; LUT_BYTES=LUT_ROWS*32; DBASE=0x38C0; DCUT=0x40A0
WS_OFF=WS_LUT+65536
WS_REC=WS_OFF+65536; RECW=EPW*12
WS_CARRY=20971520
WS_USED=WS_CARRY+256*245*512
BIG=0x40000000
```

```python
from asmlib import *
from consts import *

W2L=0; W1L=102400; STG=139264; CNT1=158464; SYNC=158720; K1_LDS=158784

def srd(a, d, b, size):
    a(f"s_mov_b32 s{d}, s{b}")
    a(f"s_and_b32 s{d+1}, s{b+1}, 0xffff")
    a(f"s_mov_b32 s{d+2}, {size}")
    a(f"s_mov_b32 s{d+3}, 0x00020000")

def gen_k1(a):
    sSV,sPOS,sSRC,sDST,sFR,sW1,sW2,sWS = 36,40,44,48,52,56,60,64
    a.label("prep_kernel")
    a(f"s_cmp_ge_u32 s2, {PW}")
    a("s_cbranch_scc1 P_END")
    a("s_load_dwordx16 s[16:31], s[0:1], 0")
    a("s_load_dwordx2 s[32:33], s[0:1], 80")
    a("v_lshrrev_b32 v1, 6, v0")
    a("v_and_b32 v2, 63, v0")
    a("v_readfirstlane_b32 s3, v1")
    a("s_waitcnt lgkmcnt(0)")
    srd(a,sSV,16,N*1024); srd(a,sPOS,18,N*6); srd(a,sSRC,20,E*4); srd(a,sDST,22,E*4)
    srd(a,sFR,24,32); srd(a,sW1,26,32768); srd(a,sW2,28,98304); srd(a,sWS,32,WS_CARRY)
    a("s_mov_b32 s4, 0xffff0000")
    a("s_cmp_lt_u32 s3, 4")
    a("s_cbranch_scc1 P_TWAVE")
    HT=3; SRC=4; DST=8; WB=12
    POS=76
    a(f"v_subrev_u32 v{HT}, 256, v0")
    a(f"s_movk_i32 s5, {EPW//4}")
    a(f"v_cmp_gt_u32 s[6:7], s5, v{HT}")
    a(f"v_lshlrev_b32 v92, 4, v{HT}")
    a(f"v_mov_b32 v93, {BIG}")
    a(f"v_cndmask_b32 v93, v93, v92, s[6:7]")
    a(f"s_mul_i32 s5, s2, {EPW*4}")
    a(f"buffer_load_dwordx4 {v(SRC,4)}, v93, {s(sSRC,4)}, s5 offen")
    a(f"buffer_load_dwordx4 {v(DST,4)}, v93, {s(sDST,4)}, s5 offen")
    a(f"v_lshrrev_b32 v94, 4, v{HT}")
    a(f"v_and_b32 v95, 15, v{HT}")
    for rb in range(4):
        a(f"s_mov_b32 s5, {rb*8192}")
        a(f"buffer_load_dwordx4 {v(WB+4*rb,4)}, v92, {s(sW1,4)}, s5 offen")
    a(f"v_mul_u32_u24 v96, 768, v94")
    a(f"v_lshl_add_u32 v96, v95, 4, v96")
    for rb in range(4):
        a(f"s_mov_b32 s5, {rb*24576}")
        for th in range(3):
            a(f"buffer_load_dwordx4 {v(WB+16+4*(rb*3+th),4)}, v96, {s(sW2,4)}, s5 offen offset:{th*256}")
    a("v_and_b32 v97, 0x13, v94")
    a("v_and_b32 v98, 4, v94")
    a("v_lshl_or_b32 v97, v98, 1, v97")
    a("v_and_b32 v98, 8, v94")
    a("v_lshrrev_b32 v98, 1, v98")
    a("v_or_b32 v97, v97, v98")
    a("v_mul_u32_u24 v97, 288, v97")
    a("v_lshl_add_u32 v97, v95, 4, v97")
    a(f"v_add_u32 v97, {W1L}, v97")
    a("v_mul_u32_u24 v98, 800, v94")
    a("v_lshrrev_b32 v99, 2, v95")
    a("v_lshl_add_u32 v98, v99, 6, v98")
    a("v_and_b32 v99, 3, v95")
    a("v_lshl_add_u32 v98, v99, 3, v98")
    for rb in range(1,4):
        a(f"v_add_u32 v{98+rb}, {rb*25600}, v98")
    a(f"v_lshlrev_b32 v102, 2, v2")
    a(f"v_add_u32 v102, {CNT1}, v102")
    a(f"v_mov_b32 v103, 0")
    a(f"v_mov_b32 v104, {SYNC}")
    a(f"ds_write_b32 v102, v103")
    a(f"ds_write_b32 v104, v103")
    a("s_waitcnt vmcnt(16)")
    SH=105
    for e in range(8):
        idx = (SRC+e) if e<4 else (DST+e-4)
        a(f"v_mul_u32_u24 v113, 6, v{idx}")
        a(f"v_and_b32 v114, -4, v113")
        a(f"buffer_load_dwordx2 {v(POS+2*e,2)}, v114, {s(sPOS,4)}, 0 offen")
        a(f"v_and_b32 v113, 2, v113")
        a(f"v_lshlrev_b32 v{SH+e}, 3, v113")
    a("s_waitcnt vmcnt(20)")
    for rb in range(4):
        a(f"ds_write_b128 v97, {v(WB+4*rb,4)} offset:{rb*9216}")
    for rb in range(4):
        a(f"s_waitcnt vmcnt({8+9-3*rb})")
        for th in range(3):
            r=WB+16+4*(rb*3+th)
            a(f"ds_write2_b64 v{98+rb}, {v(r,2)}, {v(r+2,2)} offset0:{32*th} offset1:{32*th+4}")
    a("s_waitcnt lgkmcnt(0)")
    a("s_barrier")
    a("s_waitcnt vmcnt(0)")
    REC=12; BINR=24; RANK=28; T=32
    a("v_mov_b32 v103, 1")
    a("s_mov_b32 s5, 0x322bcc77")
    a(f"s_movk_i32 s34, {DCUT}")
    a(f"s_movk_i32 s35, {NB}")
    def unpack_pos(e, o):
        lo,hi=POS+2*e,POS+2*e+1
        a(f"v_alignbit_b32 v{o+1}, v{hi}, v{lo}, v{SH+e}")
        a(f"v_lshrrev_b32 v{o+2}, v{SH+e}, v{hi}")
        a(f"v_lshlrev_b32 v{o}, 16, v{o+1}")
        a(f"v_and_b32 v{o+1}, 0xffff0000, v{o+1}")
        a(f"v_lshlrev_b32 v{o+2}, 16, v{o+2}")
    def round3(x, t):
        a(f"v_cvt_pk_bf16_f32 v{t}, v{x}, v{x+1}")
        a(f"v_cvt_pk_bf16_f32 v{x+2}, v{x+2}, v{x+2}")
        a(f"v_lshlrev_b32 v{x}, 16, v{t}")
        a(f"v_and_b32 v{x+1}, 0xffff0000, v{t}")
        a(f"v_and_b32 v{x+2}, 0xffff0000, v{x+2}")
    def round1(x):
        a(f"v_cvt_pk_bf16_f32 v{x}, v{x}, v{x}")
        a(f"v_and_b32 v{x}, 0xffff0000, v{x}")
    for e in range(4):
        A_=T; B_=T+3; Q=T+6; X=T+9
        unpack_pos(e,A_); unpack_pos(4+e,B_)
        for c in range(3): a(f"v_sub_f32 v{A_+c}, v{A_+c}, v{B_+c}")
        round3(A_,X)
        for c in range(3): a(f"v_mul_f32 v{Q+c}, v{A_+c}, v{A_+c}")
        round3(Q,X)
        a(f"v_add_f32 v{Q}, v{Q}, v{Q+1}")
        a(f"v_add_f32 v{Q}, v{Q}, v{Q+2}")
        round1(Q)
        a(f"v_add_f32 v{Q}, s5, v{Q}")
        round1(Q)
        a(f"v_sqrt_f32 v{Q}, v{Q}")
        a(f"v_mul_u32_u24 v{BINR+e}, 2675, v{DST+e}")
        round1(Q)
        a(f"v_rcp_f32 v{Q+1}, v{Q}")
        a(f"v_lshrrev_b32 v{Q+2}, 16, v{Q}")
        a(f"v_lshrrev_b32 v{BINR+e}, 19, v{BINR+e}")
        for c in range(3): a(f"v_mul_f32 v{A_+c}, v{A_+c}, v{Q+1}")
        a(f"v_cmp_gt_u32 s[{8+2*e}:{9+2*e}], s34, v{Q+2}")
        a(f"v_cvt_pk_bf16_f32 v{REC+3*e}, v{A_}, v{A_+1}")
        a(f"v_cvt_pk_bf16_f32 v{X}, v{A_+2}, 0")
        a(f"v_lshl_or_b32 v{REC+3*e+1}, v{SRC+e}, 16, v{X}")
        a(f"v_max_u32 v{Q+2}, {DBASE+1}, v{Q+2}")
        a(f"v_subrev_u32 v{Q+2}, {DBASE}, v{Q+2}")
        a(f"v_lshlrev_b32 v{Q+2}, 5, v{Q+2}")
        a(f"v_and_b32 v{Q+2}, 0xffff, v{Q+2}")
        a(f"v_mul_u32_u24 v{X}, s35, v{BINR+e}")
        a(f"v_sub_u32 v{X}, v{DST+e}, v{X}")
        a(f"v_lshl_or_b32 v{REC+3*e+2}, v{X}, 16, v{Q+2}")
        a(f"v_lshlrev_b32 v{BINR+e}, 2, v{BINR+e}")
        a(f"s_and_b64 s[{8+2*e}:{9+2*e}], s[{8+2*e}:{9+2*e}], s[6:7]")
        a(f"v_add_u32 v{X}, {CNT1}, v{BINR+e}")
        a(f"s_mov_b64 exec, s[{8+2*e}:{9+2*e}]")
        a(f"ds_add_rtn_u32 v{RANK+e}, v{X}, v103")
        a(f"s_mov_b64 exec, -1")
    def sync(target):
        L=a.newlabel("P_SYNC")
        a("s_waitcnt lgkmcnt(0)")
        a("s_mov_b64 exec, 1")
        a("ds_add_u32 v104, v103")
        a.label(L)
        a("ds_read_b32 v113, v104")
        a("s_waitcnt lgkmcnt(0)")
        a("v_readfirstlane_b32 s5, v113")
        a(f"s_cmp_lt_u32 s5, {target}")
        a(f"s_cbranch_scc1 {L}")
        a("s_mov_b64 exec, -1")
    sync(8)
    C=T; S_=T+1
    a(f"ds_read_b32 v{C}, v102")
    a("s_waitcnt lgkmcnt(0)")
    a(f"v_mov_b32 v{S_}, v{C}")
    for sh in (1,2,4,8):
        a.nop(2)
        a(f"v_add_u32_dpp v{S_}, v{S_}, v{S_} row_shr:{sh} row_mask:0xf bank_mask:0xf bound_ctrl:0")
    a.nop(2)
    a(f"v_add_u32_dpp v{S_}, v{S_}, v{S_} row_bcast:15 row_mask:0xa bank_mask:0xf")
    a.nop(2)
    a(f"v_add_u32_dpp v{S_}, v{S_}, v{S_} row_bcast:31 row_mask:0xc bank_mask:0xf")
    a.nop(1)
    a(f"v_readlane_b32 s34, v{S_}, 63")
    a(f"v_sub_u32 v{S_}, v{S_}, v{C}")
    for e in range(4):
        a(f"ds_bpermute_b32 v{BINR+e}, v{BINR+e}, v{S_}")
    a("s_cmp_lg_u32 s3, 4")
    a("s_cbranch_scc1 P_NOOFF")
    a(f"v_lshl_or_b32 v{C}, v{C}, 16, v{S_}")
    a(f"v_lshlrev_b32 v{T+2}, 10, v2")
    a(f"s_lshl_b32 s5, s2, 2")
    a(f"s_add_u32 s5, s5, {WS_OFF}")
    a(f"buffer_store_dword v{C}, v{T+2}, {s(sWS,4)}, s5 offen")
    a.label("P_NOOFF")
    a("s_waitcnt lgkmcnt(0)")
    for e in range(4):
        a(f"v_add_u32 v{BINR+e}, v{BINR+e}, v{RANK+e}")
        a(f"v_mul_u32_u24 v{BINR+e}, 12, v{BINR+e}")
        a(f"v_add_u32 v{BINR+e}, {STG}, v{BINR+e}")
        a(f"s_mov_b64 exec, s[{8+2*e}:{9+2*e}]")
        a(f"ds_write2_b32 v{BINR+e}, v{REC+3*e}, v{REC+3*e+1} offset0:0 offset1:1")
        a(f"ds_write_b32 v{BINR+e}, v{REC+3*e+2} offset:8")
        a(f"s_mov_b64 exec, -1")
    sync(16)
    a("s_mul_i32 s34, s34, 12")
    a(f"s_mul_i32 s5, s2, {RECW}")
    a(f"s_add_u32 s5, s5, {WS_REC}")
    a(f"v_add_u32 v{T}, {STG}, v92")
    for it in range(3):
        if it<2: a(f"ds_read_b128 {v(40+4*it,4)}, v{T} offset:{it*8192}")
        else:
            a(f"v_min_u32 v{T+1}, {STG+RECW-16-16384}, v{T}")
            a(f"ds_read_b128 {v(40+4*it,4)}, v{T+1} offset:{it*8192}")
    for it in range(3):
        a(f"v_add_u32 v{T+2+it}, {it*8192}, v92")
        a(f"v_cmp_gt_u32 s[8:9], s34, v{T+2+it}")
        a(f"v_mov_b32 v{T+5}, {BIG}")
        a("s_nop 0")
        a(f"v_cndmask_b32 v{T+2+it}, v{T+5}, v{T+2+it}, s[8:9]")
    for it in range(3):
        a(f"s_waitcnt lgkmcnt({2-it})")
        a(f"buffer_store_dwordx4 {v(40+4*it,4)}, v{T+2+it}, {s(sWS,4)}, s5 offen")
    a("s_endpgm")
    a.label("P_TWAVE")
    SV=4
    a("v_and_b32 v68, 15, v2")
    a("v_lshrrev_b32 v69, 4, v2")
    a("s_mul_i32 s5, s3, 13")
    a("v_add_u32 v70, s5, v68")
    a(f"v_cmp_gt_u32 s[6:7], 13, v68")
    a(f"v_cmp_gt_u32 s[8:9], {NPW}, v70")
    a("s_and_b64 s[6:7], s[6:7], s[8:9]")
    a(f"s_mul_i32 s5, s2, {NPW}")
    a("v_add_u32 v70, s5, v70")
    a("v_lshlrev_b32 v71, 10, v70")
    a("v_lshl_add_u32 v71, v69, 4, v71")
    a(f"v_mov_b32 v72, {BIG}")
    a("v_cndmask_b32 v71, v72, v71, s[6:7]")
    a("v_lshlrev_b32 v74, 1, v68")
    a(f"buffer_load_ushort v75, v74, {s(sFR,4)}, 0 offen")
    for i in range(16):
        a(f"buffer_load_dwordx4 {v(SV+4*i,4)}, v71, {s(sSV,4)}, 0 offen offset:{64*i}")
    a("v_lshlrev_b32 v73, 8, v70")
    a("v_lshl_add_u32 v73, v69, 4, v73")
    a("v_cndmask_b32 v73, v72, v73, s[6:7]")
    a(f"s_cmp_ge_u32 s2, {LUT_ROWS//16}")
    a("s_cbranch_scc1 P_NOLUT")
    a("v_lshrrev_b32 v76, 4, v0")
    a("s_lshl_b32 s5, s2, 4")
    a("v_add_u32 v76, s5, v76")
    a(f"v_add_u32 v77, {DBASE}, v76")
    a("v_lshlrev_b32 v77, 16, v77")
    def r1(x):
        a(f"v_cvt_pk_bf16_f32 v{x}, v{x}, v{x}")
        a(f"v_and_b32 v{x}, 0xffff0000, v{x}")
    a("v_mul_f32 v78, 0x40490fdb, v77"); r1(78)
    a("v_mul_f32 v78, 0x3e4ccccd, v78"); r1(78)
    a("v_mul_f32 v78, 0.15915494, v78")
    a("v_cos_f32 v78, v78")
    a("v_rcp_f32 v79, v77")
    r1(78)
    a("v_add_f32 v78, 1.0, v78"); r1(78)
    a("v_mul_f32 v78, 0.5, v78"); r1(78)
    a("s_waitcnt vmcnt(16)")
    a("v_lshlrev_b32 v75, 16, v75")
    a("v_mul_f32 v75, v75, v77"); r1(75)
    a("v_mul_f32 v75, 0.15915494, v75")
    a("v_rndne_f32 v80, v75")
    a("v_sub_f32 v75, v75, v80")
    a("v_sin_f32 v75, v75")
    a("v_cmp_ne_u32 s[8:9], 0, v76")
    r1(75)
    a("v_mul_f32 v75, v75, v79"); r1(75)
    a("v_mul_f32 v75, v75, v78")
    a("v_cvt_pk_bf16_f32 v75, v75, v75")
    a("v_cndmask_b32 v75, 0, v75, s[8:9]")
    a("v_lshl_add_u32 v74, v76, 5, v74")
    a(f"s_mov_b32 s5, {WS_LUT}")
    a(f"buffer_store_short v75, v74, {s(sWS,4)}, s5 offen")
    a.label("P_NOLUT")
    a("s_waitcnt vmcnt(16)")
    a("v_and_b32 v74, 3, v2")
    a("v_bfe_u32 v75, v2, 2, 2")
    a("v_and_b32 v76, 1, v69")
    a("v_lshrrev_b32 v77, 1, v69")
    a("v_lshl_add_u32 v76, v76, 2, v75")
    a("v_lshl_add_u32 v76, v77, 4, v76")
    a("v_mul_u32_u24 v76, 288, v76")
    a("v_lshl_add_u32 v76, v74, 3, v76")
    a(f"v_add_u32 v76, {W1L}, v76")
    a("v_lshl_add_u32 v77, v69, 2, v75")
    a("v_mul_u32_u24 v77, 800, v77")
    a("v_lshl_add_u32 v77, v74, 3, v77")
    a("v_add_u32 v78, 51200, v77")
    a("s_barrier")
    AF=80
    D=112
    H=144
    TMP=160
    def rd1(tau, buf):
        for kk in range(4):
            for z in range(2):
                a(f"ds_read_b64_tr_b16 {v(AF+16*buf+4*kk+2*z,2)}, v76 offset:{(32*kk+8*z)*288+tau*32}")
    def rd2(Tt, buf):
        for kk in range(4):
            for z in range(2):
                base = 77 if kk<2 else 78
                a(f"ds_read_b64_tr_b16 {v(AF+16*buf+4*kk+2*z,2)}, v{base} offset:{(32*(kk&1)+16*z)*800+Tt*32}")
    order=[]
    for q in range(4):
        for part in range(3):
            for z in range(2):
                order.append((part*4+q)*2+z)
    rd1(0,0)
    a("s_waitcnt vmcnt(12)")
    buf=0
    for tau in range(8):
        if tau<7: rd1(tau+1,buf^1)
        else: rd2(order[0],buf^1)
        a("s_waitcnt lgkmcnt(8)")
        for kk in range(4):
            c = "0" if kk==0 else v(D+4*tau,4)
            a(f"v_mfma_f32_16x16x32_bf16 {v(D+4*tau,4)}, {v(AF+16*buf+4*kk,4)}, {v(SV+4*kk,4)}, {c}")
        buf^=1
    a.nop(4)
    a("s_mov_b32 s5, 0xbfb8aa3b")
    for p in range(16):
        x0,x1=D+2*p,D+2*p+1
        t0,t1=TMP+2*(p&1),TMP+2*(p&1)+1
        a(f"v_cvt_pk_bf16_f32 v{x1}, v{x0}, v{x1}")
        a(f"v_lshlrev_b32 v{x0}, 16, v{x1}")
        a(f"v_and_b32 v{x1}, 0xffff0000, v{x1}")
        a(f"v_mul_f32 v{t0}, s5, v{x0}")
        a(f"v_mul_f32 v{t1}, s5, v{x1}")
        a(f"v_exp_f32 v{t0}, v{t0}")
        a(f"v_exp_f32 v{t1}, v{t1}")
        a("s_nop 0")
        a(f"v_add_f32 v{t0}, 1.0, v{t0}")
        a(f"v_add_f32 v{t1}, 1.0, v{t1}")
        a(f"v_rcp_f32 v{t0}, v{t0}")
        a(f"v_rcp_f32 v{t1}, v{t1}")
        a("s_nop 0")
        a(f"v_mul_f32 v{x0}, v{x0}, v{t0}")
        a(f"v_mul_f32 v{x1}, v{x1}, v{t1}")
        a(f"v_cvt_pk_bf16_f32 v{H+p}, v{x0}, v{x1}")
    a("s_waitcnt vmcnt(0)")
    a(f"s_mov_b32 s34, {WS_TS}")
    OUT=136
    for q in range(4):
        for i in range(6):
            k=q*6+i
            if k+1<24: rd2(order[k+1],buf^1); a("s_waitcnt lgkmcnt(8)")
            else: a("s_waitcnt lgkmcnt(0)")
            for kk in range(4):
                c = "0" if kk==0 else v(D+4*i,4)
                a(f"v_mfma_f32_16x16x32_bf16 {v(D+4*i,4)}, {v(AF+16*buf+4*kk,4)}, {v(H+4*kk,4)}, {c}")
            buf^=1
        for pp in range(4):
            a(f"v_cvt_pk_bf16_f32 v{OUT+pp}, v{D+2*pp}, v{D+2*pp+1}")
        a(f"buffer_store_dwordx4 {v(OUT,4)}, v73, {s(sWS,4)}, s34 offen offset:{64*q}")
        a(f"s_mov_b32 s35, {WS_TV+q*TSZ}")
        for pp in range(4):
            o=OUT+4*((pp+1)&1)
            x0,x1=D+8+2*pp,D+8+2*pp+1
            a(f"v_cvt_pk_bf16_f32 v{x1}, v{x0}, v{x1}")
            a(f"v_lshlrev_b32 v{x0}, 16, v{x1}")
            a(f"v_and_b32 v{x1}, 0xffff0000, v{x1}")
            for j in range(3):
                vv=SV+4*(4*(1+j)+q)+pp
                t0,t1=TMP+2*j,TMP+2*j+1
                a(f"v_lshlrev_b32 v{t0}, 16, v{vv}")
                a(f"v_and_b32 v{t1}, 0xffff0000, v{vv}")
                a(f"v_mul_f32 v{t0}, v{t0}, v{x0}")
                a(f"v_mul_f32 v{t1}, v{t1}, v{x1}")
                a(f"v_cvt_pk_bf16_f32 v{o+j}, v{t0}, v{t1}")
            a(f"v_cvt_pk_bf16_f32 v{o+3}, v{D+16+2*pp}, v{D+16+2*pp+1}")
            a(f"buffer_store_dwordx4 {v(o,4)}, v73, {s(sWS,4)}, s35 offen offset:{64*pp}")
    a.label("P_END")
    a("s_endpgm")
```

```python
from asmlib import *
from consts import *
from k1 import srd

CNTL=0; INFOL=800; POOLC=1600; FLAGL=1604
LAL=2048; NBK=304; POOL=NBK-NB; RECL=LAL+NBK*64; LUTL=RECL+NBK*256; K2_LDS=LUTL+LUT_BYTES
assert K2_LDS==163840
WIN=48
CARRY_WG=392*512
F_FIRST,F_LAST,F_S,F_NONE=0,1,2,3

def gen_k2(a):
    t0,t1,t2,t3=4,5,6,7
    sT,sSV,sOUT,sWS,sWR=8,12,16,20,24
    sSB,sVB=28,30
    sWV,sQ,sBIN,sN0,sWIN,sNEW,sFIRST,sFLAG,sMORE,sLO,sHI=range(32,43)
    cCnt,cNode,cFl=43,44,45
    xBlk,xCnt,xNode,xFl=46,47,48,49
    nBlk,nCnt,nNode,nFl=50,51,52,53
    sK,sP2=54,55
    sPEND=56; sINFO=80
    a.label("main_kernel")
    a("s_cmp_ge_u32 s2, 256")
    a("s_cbranch_scc1 M_END")
    a("s_load_dwordx2 s[4:5], s[0:1], 0")
    a("s_load_dwordx4 s[44:47], s[0:1], 56")
    a("s_load_dwordx2 s[6:7], s[0:1], 80")
    a("v_lshrrev_b32 v1, 6, v0")
    a("s_and_b32 s3, s2, 7")
    a(f"v_readfirstlane_b32 s{sWV}, v1")
    a(f"s_and_b32 s{sQ}, s3, 3")
    a("s_lshr_b32 s3, s3, 2")
    a("s_lshl_b32 s3, s3, 5")
    a(f"s_lshr_b32 s{sBIN}, s2, 3")
    a(f"s_add_u32 s{sBIN}, s{sBIN}, s3")
    a(f"s_mul_i32 s{sN0}, s{sBIN}, {NB}")
    a(f"s_mov_b32 s{sWIN}, 0")
    a(f"s_mov_b32 s{sNEW}, 1")
    a(f"s_mov_b32 s{sFIRST}, 1")
    a(f"s_mov_b32 s{sLO}, 0x05040100")
    a(f"s_mov_b32 s{sHI}, 0x07060302")
    a("s_waitcnt lgkmcnt(0)")
    srd(a,sWS,6,WS_CARRY+256*CARRY_WG)
    srd(a,sSV,4,N*1024); srd(a,sOUT,46,N*1024); srd(a,sWR,44,16*768)
    a(f"s_mul_i32 s3, s{sQ}, {TSZ}")
    a(f"s_add_u32 s{sVB}, s6, s3")
    a(f"s_addc_u32 s{sVB+1}, s7, 0")
    a(f"s_and_b32 s{sVB+1}, s{sVB+1}, 0xffff")
    a(f"s_add_u32 s{sSB}, s6, {WS_TS}")
    a(f"s_addc_u32 s{sSB+1}, s7, 0")
    a(f"s_and_b32 s{sSB+1}, s{sSB+1}, 0xffff")
    a(f"s_mov_b32 s{sT+2}, {TSZ}")
    a(f"s_mov_b32 s{sT+3}, 0x00020000")
    a.label("M_ROUND")
    a(f"s_mov_b32 s{sT}, s{sVB}")
    a(f"s_mov_b32 s{sT+1}, s{sVB+1}")
    TID=119; LANE=118; N16=117; GAM=116; T16=107; PAIR=106; GG=105
    a(f"v_mbcnt_lo_u32_b32 v{LANE}, -1, 0")
    a(f"v_mbcnt_hi_u32_b32 v{LANE}, -1, v{LANE}")
    a(f"s_lshl_b32 s3, s{sWV}, 6")
    a(f"v_add_u32 v{TID}, s3, v{LANE}")
    a(f"v_and_b32 v{N16}, 15, v{LANE}")
    a(f"v_and_b32 v{GAM}, -16, v{TID}")
    OFFV=0
    a(f"s_lshl_b32 s3, s{sBIN}, 10")
    a(f"s_add_u32 s3, s3, {WS_OFF}")
    a(f"buffer_load_dwordx4 {v(OFFV,4)}, v{GAM}, {s(sWS,4)}, s3 offen")
    a(f"v_lshlrev_b32 v{T16}, 4, v{TID}")
    a(f"s_lshl_b32 s{t0}, s{sWV}, 10")
    a(f"s_add_u32 s{t0}, s{t0}, {LUTL}")
    for it in range(4):
        if it==3:
            a(f"s_cmp_eq_u32 s{sWV}, 15")
            a("s_cbranch_scc1 M_NODMA")
        a(f"s_add_u32 m0, s{t0}, {it*16384}")
        a(f"s_mov_b32 s3, {WS_LUT+it*16384}")
        a(f"buffer_load_dwordx4 v{T16}, {s(sWS,4)}, s3 offen lds")
    a.label("M_NODMA")
    WRAW=108
    a(f"v_lshrrev_b32 v{GG}, 4, v{LANE}")
    a(f"v_mul_u32_u24 v5, {4*768}, v{GG}")
    a(f"v_and_b32 v6, 3, v{N16}")
    a(f"v_lshrrev_b32 v7, 2, v{N16}")
    a(f"v_lshl_add_u32 v{PAIR}, v6, 2, v7")
    a(f"v_lshl_add_u32 v5, v{PAIR}, 2, v5")
    a(f"s_lshl_b32 s3, s{sQ}, 6")
    for r in range(4):
        a(f"buffer_load_dword v{WRAW+r}, v5, {s(sWR,4)}, s3 offen offset:{256+768*r}")
        a(f"buffer_load_dword v{WRAW+4+r}, v5, {s(sWR,4)}, s3 offen offset:{512+768*r}")
    a("v_mov_b32 v8, 0"); a("v_mov_b32 v9, 0xffff0000"); a("v_mov_b32 v10, 0"); a("v_mov_b32 v11, 0xffff0000")
    a("v_mov_b32 v12, 0"); a("v_mov_b32 v13, 0"); a("v_mov_b32 v14, 0"); a("v_mov_b32 v15, 0")
    a(f"ds_write_b128 v{T16}, v[12:15]")
    a(f"v_add_u32 v16, {RECL}, v{T16}")
    for it in range(4):
        a(f"ds_write_b128 v16, v[8:11] offset:{it*16384}")
    a(f"v_add_u32 v17, {RECL+65536}, v{T16}")
    a(f"s_cmp_ge_u32 s{sWV}, {(NBK*256-65536)//1024}")
    a("s_cbranch_scc1 M_I1")
    a("ds_write_b128 v17, v[8:11]")
    a.label("M_I1")
    assert (RECL-16384)%1024==0 and (NBK*256-65536)%1024==0
    a(f"s_cmp_ge_u32 s{sWV}, {(RECL-16384)//1024}")
    a("s_cbranch_scc1 M_I2")
    a(f"ds_write_b128 v{T16}, v[12:15] offset:16384")
    a.label("M_I2")
    SA=20; REM=24; RC=28; A4=76
    rc=lambda i: RC+4*i
    pm=lambda i: f"s[{sPEND+2*i}:{sPEND+2*i+1}]"
    a(f"v_lshrrev_b32 v16, 2, v{GAM}")
    a(f"v_add_u32 v17, s{sWIN}, v{N16}")
    a(f"s_movk_i32 s3, {RECW}")
    a("s_waitcnt vmcnt(11)")
    for k in range(4):
        a(f"v_add_u32 v18, {k}, v16")
        a(f"v_lshrrev_b32 v{REM+k}, 16, v{OFFV+k}")
        a(f"v_cmp_gt_u32 vcc, {PW}, v18")
        a(f"v_and_b32 v{SA+k}, 0xffff, v{OFFV+k}")
        a(f"v_add_u32 v{SA+k}, v{SA+k}, v17")
        a(f"v_cndmask_b32 v{REM+k}, 0, v{REM+k}, vcc")
        a(f"v_mul_u32_u24 v{SA+k}, 12, v{SA+k}")
        a(f"v_mad_u32_u24 v{SA+k}, v18, s3, v{SA+k}")
        a(f"v_sub_u32 v{REM+k}, v{REM+k}, v17")
    a(f"s_cmp_eq_u32 s{sNEW}, 0")
    a("s_cbranch_scc1 M_OLDWIN")
    a(f"v_max_i32 v18, v{REM}, v{REM+1}")
    a(f"v_max3_i32 v18, v18, v{REM+2}, v{REM+3}")
    a(f"v_cmp_lt_i32 vcc, {WIN}, v18")
    for c in range(3):
        for k in range(4):
            a(f"v_cmp_lt_i32 {pm(c*4+k)}, {16*c}, v{REM+k}")
    a("s_cmp_lg_u64 vcc, 0")
    a(f"s_cselect_b32 s{sMORE}, 2, 0")
    a.label("M_OLDWIN")
    a(f"s_mov_b32 s3, {WS_REC}")
    def each_slot(body, tag):
        for i in range(12):
            L=a.newlabel(tag)
            a(f"s_mov_b64 exec, {pm(i)}")
            a(f"s_cbranch_execz {L}")
            body(i)
            a.label(L)
        a("s_mov_b64 exec, -1")
    each_slot(lambda i: a(f"buffer_load_dwordx3 {v(rc(i),3)}, v{SA+i%4}, {s(sWS,4)}, s3 offen offset:{192*(i//4)}"), "M_LD")
    a("v_mov_b32 v16, 1")
    a("v_mov_b32 v17, 2")
    a("s_waitcnt lgkmcnt(0)")
    a("s_barrier")
    a("s_waitcnt vmcnt(0)")
    def rank(i):
        a(f"v_lshlrev_b32_sdwa v{A4+i}, v17, v{rc(i)+2} dst_sel:DWORD dst_unused:UNUSED_PAD src0_sel:DWORD src1_sel:WORD_1")
        a(f"ds_add_rtn_u32 v{rc(i)+3}, v{A4+i}, v16 offset:{CNTL}")
    each_slot(rank,"M_RK")
    a("s_waitcnt lgkmcnt(0)")
    def place(i):
        a(f"v_cmp_gt_u32 vcc, 32, v{rc(i)+3}")
        a(f"v_lshl_add_u32 v18, v{A4+i}, 3, v{rc(i)+3}")
        a(f"s_andn2_b64 {pm(i)}, exec, vcc")
        a(f"v_lshlrev_b32 v19, 3, v18")
        a(f"v_lshlrev_b32 v18, 1, v18")
        a(f"s_mov_b64 exec, vcc")
        a(f"ds_write_b64 v19, {v(rc(i),2)} offset:{RECL}")
        a(f"ds_write_b16 v18, v{rc(i)+2} offset:{LAL}")
    each_slot(place,"M_PL")
    a("s_waitcnt lgkmcnt(0)")
    a("s_barrier")
    a(f"s_cmp_ge_u32 s{sWV}, 4")
    a("s_cbranch_scc1 M_NOALLOC")
    a(f"v_lshlrev_b32 v18, 2, v{TID}")
    a(f"v_cmp_gt_u32 vcc, {NB}, v{TID}")
    a("s_mov_b64 exec, vcc")
    a(f"ds_read_b32 v19, v18 offset:{CNTL}")
    a(f"v_mov_b32 v20, {POOL}")
    a(f"v_mov_b32 v21, {POOLC}")
    a("s_waitcnt lgkmcnt(0)")
    a("v_cmp_lt_u32 vcc, 32, v19")
    a("s_and_saveexec_b64 s[0:1], vcc")
    a("ds_add_rtn_u32 v20, v21, v16")
    a("s_mov_b64 exec, s[0:1]")
    a("s_waitcnt lgkmcnt(0)")
    a(f"v_cmp_gt_u32 vcc, {POOL}, v20")
    a(f"v_add_u32 v20, {NB}, v20")
    a("v_min_u32 v21, 64, v19")
    a("v_lshl_or_b32 v21, v20, 8, v21")
    a("v_min_u32 v19, 32, v19")
    a("v_cndmask_b32 v19, v19, v21, vcc")
    a(f"ds_write_b32 v18, v19 offset:{INFOL}")
    a("s_mov_b64 exec, -1")
    a("s_waitcnt lgkmcnt(0)")
    a.label("M_NOALLOC")
    a("s_barrier")
    def place2(i):
        a(f"ds_read_b32 v18, v{A4+i} offset:{INFOL}")
        a("s_waitcnt lgkmcnt(0)")
        a("v_and_b32 v19, 0xff, v18")
        a(f"v_cmp_lt_u32 vcc, v{rc(i)+3}, v19")
        a("v_lshrrev_b32 v18, 8, v18")
        a(f"v_and_b32 v19, 31, v{rc(i)+3}")
        a(f"s_andn2_b64 {pm(i)}, exec, vcc")
        a("v_lshl_add_u32 v18, v18, 5, v19")
        a("v_lshlrev_b32 v19, 3, v18")
        a("v_lshlrev_b32 v18, 1, v18")
        a("s_mov_b64 exec, vcc")
        a(f"ds_write_b64 v19, {v(rc(i),2)} offset:{RECL}")
        a(f"ds_write_b16 v18, v{rc(i)+2} offset:{LAL}")
    each_slot(place2,"M_P2")
    a(f"s_or_b64 s[0:1], {pm(0)}, {pm(1)}")
    for i in range(2,12): a(f"s_or_b64 s[0:1], s[0:1], {pm(i)}")
    a("s_cselect_b32 s3, 1, 0")
    a(f"s_or_b32 s3, s3, s{sMORE}")
    a("s_cbranch_scc0 M_NOFLAG")
    a("v_mov_b32 v18, s3")
    a(f"v_mov_b32 v19, {FLAGL}")
    a("ds_or_b32 v19, v18")
    a.label("M_NOFLAG")
    a(f"v_lshlrev_b32 v18, 4, v{LANE}")
    a(f"v_add_u32 v18, s{sWV}, v18")
    a(f"s_mul_i32 s3, s{sQ}, {NQ}")
    a(f"s_sub_u32 s3, s3, {NB}")
    a(f"v_add_u32 v19, s3, v18")
    a(f"v_cmp_gt_u32 vcc, {NB}, v18")
    a(f"v_mov_b32 v21, {1<<26}")
    a(f"s_sub_u32 s3, {N}, s{sN0}")
    a(f"v_cndmask_b32 v19, v19, v18, vcc")
    a(f"v_cndmask_b32 v21, v21, 0, vcc")
    a(f"v_min_u32 v19, {NB-1}, v19")
    a(f"v_lshlrev_b32 v20, 2, v19")
    a(f"ds_read_b32 v22, v20 offset:{INFOL}")
    a(f"v_cmp_gt_u32 vcc, s3, v19")
    a(f"v_lshl_or_b32 v21, v19, 17, v21")
    a(f"v_mov_b32 v23, {1<<25}")
    a(f"v_cndmask_b32 v23, 0, v23, vcc")
    a(f"v_or_b32 v21, v21, v23")
    a(f"v_cmp_gt_u32 vcc, {NB+NQ}, v18")
    a(f"v_mov_b32 v23, {1<<27}")
    a("s_waitcnt lgkmcnt(0)")
    a("v_or_b32 v21, v21, v22")
    a("v_cndmask_b32 v21, v23, v21, vcc")
    a("s_barrier")
    a(f"v_mov_b32 v19, {FLAGL}")
    a("ds_read_b32 v18, v19")
    for k in range(16):
        a(f"v_readlane_b32 s{sINFO+k}, v21, {k}")
    G=0; F=32; Y=56; DW=64; X=80; WV=88; WR=96; A=100; R=104; AP=108; TU=108; LW=112; SRCW=116; TA=117; TA2=118; SVR=119
    PLA,PLAP,PR,PSRC,C8,C8P,C16,VOUT=range(120,128)
    a(f"v_bfe_u32 v20, v{LANE}, 2, 2")
    a(f"v_lshlrev_b32 v{PLA}, 3, v20")
    a(f"v_lshl_add_u32 v{PLA}, v{GG}, 1, v{PLA}")
    a(f"v_lshlrev_b32 v{PR}, 2, v{PLA}")
    a(f"v_and_b32 v22, 3, v{LANE}")
    a(f"v_lshlrev_b32 v{PLAP}, 3, v22")
    a(f"v_add_u32 v{C8}, {LUTL}, v{PLAP}")
    a(f"v_lshl_add_u32 v{PLAP}, v20, 1, v{PLAP}")
    a(f"v_and_b32 v22, 7, v{LANE}")
    a(f"v_lshlrev_b32 v{PSRC}, 5, v22")
    a(f"v_lshl_add_u32 v{PSRC}, v{GG}, 3, v{PSRC}")
    a(f"v_lshlrev_b32 v{C8P}, 3, v{GG}")
    a(f"v_add_u32 v{C8P}, {LUTL}, v{C8P}")
    a(f"v_lshlrev_b32 v{C16}, 4, v{N16}")
    a(f"v_lshlrev_b32 v{VOUT}, 8, v{GG}")
    a(f"v_lshl_add_u32 v{VOUT}, v{PAIR}, 2, v{VOUT}")
    a(f"s_lshl_b32 s3, s{sQ}, 6")
    a(f"s_add_u32 s3, s3, 256")
    a(f"v_add_u32 v{VOUT}, s3, v{VOUT}")
    a(f"v_cmp_gt_u32 vcc, 48, v{LANE}")
    a(f"v_mov_b32 v22, {BIG}")
    for r in range(4):
        a(f"v_lshlrev_b32 v{WV+r}, 16, v{WRAW+r}")
        a(f"v_and_b32 v{WV+4+r}, 0xffff0000, v{WRAW+r}")
    a(f"v_cndmask_b32 v{VOUT}, v22, v{VOUT}, vcc")
    for r in range(4):
        a(f"v_lshlrev_b32 v{24+r}, 16, v{WRAW+4+r}")
        a(f"v_and_b32 v{28+r}, 0xffff0000, v{WRAW+4+r}")
    for r in range(8): a(f"v_mul_f32 v{24+r}, 0x3e800000, v{24+r}")
    for k in range(4): a(f"v_cvt_pk_bf16_f32 v{WR+k}, v{24+2*k}, v{25+2*k}")
    a("s_waitcnt lgkmcnt(0)")
    a(f"v_readfirstlane_b32 s{sFLAG}, v18")
    for r in list(range(0,64))+list(range(A,A+8)): a(f"v_mov_b32 v{r}, 0")
    a(f"s_mov_b32 s{sK}, 0")
    a(f"s_mov_b32 s{sP2}, 0")
    a(f"s_mov_b32 s{nNode}, 0")

    def next_desc():
        L2=a.newlabel("M_ND2"); LE=a.newlabel("M_NDE")
        a(f"s_cmp_lg_u32 s{sP2}, 0")
        a(f"s_cbranch_scc1 {L2}")
        a(f"s_min_u32 m0, s{sK}, 15")
        a(f"s_cmp_gt_u32 s{sK}, 15")
        a(f"s_movrels_b32 s{t0}, s{sINFO}")
        a(f"s_cselect_b32 s{t0}, {1<<27}, s{t0}")
        a(f"s_add_u32 s{sK}, s{sK}, 1")
        a(f"s_bfe_u32 s{nNode}, s{t0}, 0x80011")
        a(f"s_mov_b32 s{nBlk}, s{nNode}")
        a(f"s_and_b32 s{nCnt}, s{t0}, 0xff")
        a(f"s_lshr_b32 s{nFl}, s{t0}, 24")
        a(f"s_or_b32 s{nFl}, s{nFl}, 1")
        a(f"s_cmp_le_u32 s{nCnt}, 32")
        a(f"s_cbranch_scc1 {LE}")
        a(f"s_mov_b32 s{sP2}, s{t0}")
        a(f"s_mov_b32 s{nCnt}, 32")
        a(f"s_andn2_b32 s{nFl}, s{nFl}, 2")
        a(f"s_branch {LE}")
        a.label(L2)
        a(f"s_bfe_u32 s{nBlk}, s{sP2}, 0x90008")
        a(f"s_and_b32 s{nCnt}, s{sP2}, 0xff")
        a(f"s_sub_u32 s{nCnt}, s{nCnt}, 32")
        a(f"s_lshr_b32 s{nFl}, s{sP2}, 24")
        a(f"s_andn2_b32 s{nFl}, s{nFl}, 1")
        a(f"s_mov_b32 s{sP2}, 0")
        a.label(LE)
    def raw_reads(full):
        a(f"s_lshl_b32 s{t0}, s{nBlk}, 6")
        a(f"s_lshl_b32 s{t1}, s{nBlk}, 8")
        a(f"v_add_u32 v{TA}, s{t0}, v{PLA}")
        a(f"ds_read_u16 v{LW}, v{TA} offset:{LAL}")
        a(f"ds_read_u16 v{LW+1}, v{TA} offset:{LAL+32}")
        a(f"v_add_u32 v{TA2}, s{t1}, v{PSRC}")
        a(f"ds_read_u16 v{SRCW}, v{TA2} offset:{RECL+6}")
        if full:
            a(f"v_add_u32 v{TA}, s{t0}, v{PLAP}")
            a(f"ds_read_u16 v{LW+2}, v{TA} offset:{LAL}")
            a(f"ds_read_u16 v{LW+3}, v{TA} offset:{LAL+32}")
    def rotate():
        a(f"s_mov_b32 s{cCnt}, s{xCnt}"); a(f"s_mov_b32 s{cNode}, s{xNode}"); a(f"s_mov_b32 s{cFl}, s{xFl}")
        a(f"s_mov_b32 s{xBlk}, s{nBlk}"); a(f"s_mov_b32 s{xCnt}, s{nCnt}"); a(f"s_mov_b32 s{xNode}, s{nNode}"); a(f"s_mov_b32 s{xFl}, s{nFl}")
    def gathers():
        LE=a.newlabel("M_GE")
        for i in range(8):
            a(f"s_cmp_le_u32 s{xCnt}, {4*i}")
            a(f"s_cbranch_scc1 {LE}")
            ta = TA if i%2==0 else TA2
            a(f"v_add_u32_dpp v{ta}, v{SRCW}, v{C16} row_newbcast:{i} row_mask:0xf bank_mask:0xf")
            a(f"buffer_load_dwordx4 {v(G+4*i,4)}, v{ta}, {s(sT,4)}, 0 offen")
        a.label(LE)
    def node_off(dst, node):
        a(f"s_add_u32 s{dst}, s{sN0}, s{node}")
        a(f"s_min_u32 s{dst}, s{dst}, {N-1}")
        a(f"s_lshl_b32 s{dst}, s{dst}, 10")
    def sv_load(node):
        node_off(t2,node)
        a(f"buffer_load_dword v{SVR}, v{VOUT}, {s(sSV,4)}, s{t2} offen")
    def finish(Z0,Z1,kind,Ltop,Ltop0,Lexit_check):
        LS=a.newlabel("M_SLOW"); LB=a.newlabel("M_BACK"); LC=a.newlabel("M_NOC"); LN=a.newlabel("M_NOST")
        a(f"s_xor_b32 s{t0}, s{sFIRST}, 1")
        a(f"s_or_b32 s{t0}, s{t0}, s{sFLAG}")
        a(f"s_cbranch_scc1 {LS}")
        a.label(LB)
        a(f"v_lshlrev_b32 v{TA}, 16, v{SVR}")
        a(f"v_and_b32 v{TA2}, 0xffff0000, v{SVR}")
        a(f"v_add_f32 v{Z0}, v{Z0}, v{TA}")
        a(f"v_add_f32 v{Z1}, v{Z1}, v{TA2}")
        node_off(t2,cNode)
        a(f"v_cvt_pk_bf16_f32 v{Z0}, v{Z0}, v{Z1}")
        a(f"buffer_store_dword v{Z0}, v{VOUT}, {s(sOUT,4)}, s{t2} offen")
        sv_load(xNode)
        rotate()
        Lexit_check(Ltop)
        a.label(LS)
        a(f"v_mbcnt_lo_u32_b32 v{TA}, -1, 0")
        a(f"v_mbcnt_hi_u32_b32 v{TA}, -1, v{TA}")
        a(f"v_lshlrev_b32 v{TA}, 2, v{TA}")
        a(f"s_mul_i32 s{t2}, s2, {CARRY_WG}")
        a(f"s_lshl_b32 s{t3}, s{cNode}, 9")
        a(f"s_add_u32 s{t2}, s{t2}, s{t3}")
        a(f"s_add_u32 s{t2}, s{t2}, {WS_CARRY+kind*NB*512}")
        a(f"s_cmp_lg_u32 s{sFIRST}, 0")
        a(f"s_cbranch_scc1 {LC}")
        a(f"buffer_load_dword v{TA2}, v{TA}, {s(sWS,4)}, s{t2} offen sc1")
        a("s_waitcnt vmcnt(0)")
        a(f"v_add_f32 v{Z0}, v{Z0}, v{TA2}")
        a(f"buffer_load_dword v{TA2}, v{TA}, {s(sWS,4)}, s{t2} offen offset:256 sc1")
        a("s_waitcnt vmcnt(0)")
        a(f"v_add_f32 v{Z1}, v{Z1}, v{TA2}")
        a.label(LC)
        a(f"s_cmp_eq_u32 s{sFLAG}, 0")
        a(f"s_cbranch_scc1 {LB}")
        a(f"buffer_store_dword v{Z0}, v{TA}, {s(sWS,4)}, s{t2} offen")
        a(f"buffer_store_dword v{Z1}, v{TA}, {s(sWS,4)}, s{t2} offen offset:256")
        rotate()
        Lexit_check(Ltop0)

    next_desc()
    raw_reads(True)
    sv_load(nNode)
    a(f"s_mov_b32 s{xCnt}, 0"); a(f"s_mov_b32 s{xNode}, 0"); a(f"s_mov_b32 s{xFl}, 1")
    rotate()
    a("s_branch V_MID")
    a.label("V_TOP0")
    a("s_waitcnt vmcnt(0)")
    a.label("V_TOP")
    a("s_waitcnt vmcnt(2)")
    for p in range(4):
        if p>0:
            a(f"s_cmp_le_u32 s{cCnt}, {8*p}")
            a("s_cbranch_scc1 V_MID")
        Ga,Gb=G+8*p,G+8*p+4
        h=p>>1; r=(2*p)&3
        d0=DW+(2*h)*4+r; d1=DW+(2*h+1)*4+r
        a(f"v_lshlrev_b32 v{TU}, 16, v{Ga+3}")
        a(f"v_and_b32 v{TU+1}, 0xffff0000, v{Ga+3}")
        a(f"v_lshlrev_b32 v{TU+2}, 16, v{Gb+3}")
        a(f"v_and_b32 v{TU+3}, 0xffff0000, v{Gb+3}")
        ms=[f"v_mul_f32 v{d0}, v{d0}, v{TU}", f"v_mul_f32 v{d1}, v{d1}, v{TU+1}",
            f"v_mul_f32 v{d0+1}, v{d0+1}, v{TU+2}", f"v_mul_f32 v{d1+1}, v{d1+1}, v{TU+3}"]
        for j in range(3):
            a(f"v_perm_b32 v{F+(2*j)*4+p}, v{Gb+j}, v{Ga+j}, s{sLO}")
            a(ms[j])
            a(f"v_perm_b32 v{F+(2*j+1)*4+p}, v{Gb+j}, v{Ga+j}, s{sHI}")
        a(ms[3])
        a(f"v_cvt_pk_bf16_f32 v{Y+p}, v{d0}, v{d0+1}")
        a(f"v_cvt_pk_bf16_f32 v{Y+4+p}, v{d1}, v{d1+1}")
    a.label("V_MID")
    a("s_waitcnt vmcnt(0) lgkmcnt(0)")
    a(f"s_bitcmp1_b32 s{xFl}, {F_S}")
    a(f"v_lshlrev_b32 v{SRCW}, 8, v{SRCW}")
    a(f"s_cselect_b32 s{sT}, s{sSB}, s{sT}")
    a(f"s_cselect_b32 s{sT+1}, s{sSB+1}, s{sT+1}")
    a(f"v_add_u32 v{LW+2}, v{LW+2}, v{C8P}")
    a(f"v_add_u32 v{LW+3}, v{LW+3}, v{C8P}")
    a(f"ds_read_b64 {v(AP,2)}, v{LW+2}")
    a(f"ds_read_b64 {v(AP+2,2)}, v{LW+3}")
    gathers()
    a(f"s_bitcmp1_b32 s{cFl}, {F_FIRST}")
    a("s_cbranch_scc0 V_ACC")
    for t in range(2): a(f"v_mfma_f32_16x16x32_bf16 {v(X+4*t,4)}, {v(R,4)}, {v(Y+4*t,4)}, 0")
    a.label("V_ACCB")
    def MD(k): a(f"v_mfma_f32_16x16x32_bf16 {v(DW+4*(k&3),4)}, {v(A,4)}, {v(F+4*k,4)}, 0")
    def post(k):
        j,t=k>>1,k&1
        for r in range(4): a(f"v_fmac_f32 v{X+4*t+j}, v{DW+4*(k&3)+r}, v{WV+4*t+r}")
    for k in range(4): MD(k)
    a(f"s_lshl_b32 s{t1}, s{xBlk}, 8")
    a(f"v_add_u32 v{TA}, s{t1}, v{PR}")
    a(f"ds_read_b64_tr_b16 {v(R,2)}, v{TA} offset:{RECL}")
    a(f"ds_read_b64_tr_b16 {v(R+2,2)}, v{TA} offset:{RECL+128}")
    a(f"v_add_u32 v{LW}, v{LW}, v{C8}")
    a(f"v_add_u32 v{LW+1}, v{LW+1}, v{C8}")
    post(0); MD(4); post(1); MD(5)
    a(f"ds_read_b64_tr_b16 {v(A,2)}, v{LW}")
    a(f"ds_read_b64_tr_b16 {v(A+2,2)}, v{LW+1}")
    post(2); post(3); post(4); post(5)
    a("s_waitcnt lgkmcnt(4)")
    for h in range(2):
        for t in range(2):
            a(f"v_mfma_f32_16x16x16_bf16 {v(DW+(2*h+t)*4,4)}, {v(AP+2*h,2)}, {v(WR+2*t,2)}, 0")
    next_desc()
    raw_reads(True)
    def vexit(L):
        a(f"s_and_b32 s{t0}, s{cFl}, {(1<<F_S)|(1<<F_NONE)}")
        a(f"s_cbranch_scc0 {L}")
        a("s_branch S_START")
    a(f"s_bitcmp1_b32 s{cFl}, {F_LAST}")
    a("s_cbranch_scc1 V_EPI")
    rotate()
    vexit("V_TOP0")
    a.label("V_ACC")
    for t in range(2): a(f"v_mfma_f32_16x16x32_bf16 {v(X+4*t,4)}, {v(R,4)}, {v(Y+4*t,4)}, {v(X+4*t,4)}")
    a("s_branch V_ACCB")
    a.label("V_EPI")
    for t in range(2):
        a(f"v_permlane32_swap_b32 v{X+4*t}, v{X+4*t+2}")
        a(f"v_permlane32_swap_b32 v{X+4*t+1}, v{X+4*t+3}")
    for t in range(2):
        a(f"v_add_f32 v{X+4*t}, v{X+4*t}, v{X+4*t+2}")
        a(f"v_add_f32 v{X+4*t+1}, v{X+4*t+1}, v{X+4*t+3}")
    a(f"v_permlane16_swap_b32 v{X}, v{X+1}")
    a("s_nop 0")
    a(f"v_permlane16_swap_b32 v{X+4}, v{X+5}")
    a(f"v_add_f32 v{X}, v{X}, v{X+1}")
    a(f"v_add_f32 v{X+4}, v{X+4}, v{X+5}")
    finish(X,X+4,0,"V_TOP","V_TOP0",vexit)
    FS=32; WS_=64; CAR=[96,97,98,99,104,105,106,107]
    a.label("S_START")
    a(f"s_bitcmp1_b32 s{cFl}, {F_NONE}")
    a("s_cbranch_scc1 M_DONE")
    a(f"v_mbcnt_lo_u32_b32 v{TA}, -1, 0")
    a(f"v_mbcnt_hi_u32_b32 v{TA}, -1, v{TA}")
    a(f"v_lshrrev_b32 v{TA}, 4, v{TA}")
    a(f"v_lshl_add_u32 v{VOUT}, v{TA}, 2, v{C16}")
    a(f"v_mul_u32_u24 v{TA}, {4*768}, v{TA}")
    a(f"v_add_u32 v{TA}, v{TA}, v{C16}")
    for r in range(4):
        a(f"buffer_load_dwordx4 {v(FS+4*r,4)}, v{TA}, {s(sWR,4)}, 0 offen offset:{768*r}")
    sv_load(cNode)
    a("s_waitcnt vmcnt(0)")
    for r in range(4):
        for d in range(4):
            a(f"v_lshlrev_b32 v{WS_+(2*d)*4+r}, 16, v{FS+4*r+d}")
            a(f"v_and_b32 v{WS_+(2*d+1)*4+r}, 0xffff0000, v{FS+4*r+d}")
    a.label("S_TOP0")
    a("s_waitcnt vmcnt(0)")
    a.label("S_TOP")
    a("s_waitcnt vmcnt(2)")
    for p in range(4):
        Ga,Gb=G+8*p,G+8*p+4
        for d in range(4):
            a(f"v_perm_b32 v{FS+(2*d)*4+p}, v{Gb+d}, v{Ga+d}, s{sLO}")
            a(f"v_perm_b32 v{FS+(2*d+1)*4+p}, v{Gb+d}, v{Ga+d}, s{sHI}")
    a("s_waitcnt vmcnt(0) lgkmcnt(0)")
    a(f"v_lshlrev_b32 v{SRCW}, 8, v{SRCW}")
    a(f"v_add_u32 v{LW}, v{LW}, v{C8}")
    a(f"v_add_u32 v{LW+1}, v{LW+1}, v{C8}")
    gathers()
    for k in range(8):
        a(f"v_mfma_f32_16x16x32_bf16 {v(FS+4*k,4)}, {v(A,4)}, {v(FS+4*k,4)}, 0")
    a(f"ds_read_b64_tr_b16 {v(A,2)}, v{LW}")
    a(f"ds_read_b64_tr_b16 {v(A+2,2)}, v{LW+1}")
    next_desc()
    raw_reads(False)
    for k in range(8):
        a(f"v_mul_f32 v{FS+4*k}, v{FS+4*k}, v{WS_+4*k}")
        for r in range(1,4): a(f"v_fmac_f32 v{FS+4*k}, v{FS+4*k+r}, v{WS_+4*k+r}")
    a(f"s_bitcmp1_b32 s{cFl}, {F_FIRST}")
    a("s_cbranch_scc1 S_NOCAR")
    for k in range(8): a(f"v_add_f32 v{FS+4*k}, v{FS+4*k}, v{CAR[k]}")
    a.label("S_NOCAR")
    def sexit(L):
        a(f"s_bitcmp1_b32 s{cFl}, {F_NONE}")
        a(f"s_cbranch_scc0 {L}")
        a("s_branch M_DONE")
    a(f"s_bitcmp1_b32 s{cFl}, {F_LAST}")
    a("s_cbranch_scc1 S_EPI")
    for k in range(8): a(f"v_mov_b32 v{CAR[k]}, v{FS+4*k}")
    rotate()
    sexit("S_TOP0")
    a.label("S_EPI")
    ac=lambda k: FS+4*k
    for k in range(4): a(f"v_permlane32_swap_b32 v{ac(k)}, v{ac(k+4)}")
    for k in range(4): a(f"v_add_f32 v{ac(k)}, v{ac(k)}, v{ac(k+4)}")
    a("s_nop 0")
    a(f"v_permlane16_swap_b32 v{ac(0)}, v{ac(2)}")
    a(f"v_permlane16_swap_b32 v{ac(1)}, v{ac(3)}")
    a(f"v_add_f32 v{ac(0)}, v{ac(0)}, v{ac(2)}")
    a(f"v_add_f32 v{ac(1)}, v{ac(1)}, v{ac(3)}")
    finish(ac(0),ac(1),1,"S_TOP","S_TOP0",sexit)
    a.label("M_DONE")
    a(f"s_cmp_eq_u32 s{sFLAG}, 0")
    a("s_cbranch_scc1 M_END")
    a("s_waitcnt vmcnt(0) lgkmcnt(0)")
    a("s_barrier")
    a(f"s_mov_b32 s{sFIRST}, 0")
    a(f"s_bitcmp1_b32 s{sFLAG}, 0")
    a(f"s_cselect_b32 s{sNEW}, 0, 1")
    a(f"s_cselect_b32 s3, 0, {WIN}")
    a(f"s_add_u32 s{sWIN}, s{sWIN}, s3")
    a("s_branch M_ROUND")
    a.label("M_END")
    a("s_endpgm")
```

```python
import sys, os
from asmlib import *
from consts import *
import k1, k2
HDR=open('standalone__molecular_angular_painn__graph.s.ref').read().split("; Override launch")[0]
def desc(name, nv, ns):
    return f""".amdhsa_kernel {name}
  .amdhsa_next_free_vgpr {nv}
  .amdhsa_next_free_sgpr {ns}
  .amdhsa_accum_offset {(nv+3)//4*4}
  .amdhsa_group_segment_fixed_size 0
  .amdhsa_kernarg_size 88
  .amdhsa_user_sgpr_count 2
  .amdhsa_user_sgpr_kernarg_segment_ptr 1
  .amdhsa_system_sgpr_workgroup_id_x 1
  .amdhsa_float_denorm_mode_32 3
.end_amdhsa_kernel
"""
out=HDR
out+=f"; @launch kernel=prep_kernel grid=({PW+NTW},1,1) block=(1024,1,1) lds={k1.K1_LDS}\n"
out+=f"; @launch kernel=main_kernel grid=(256,1,1) block=(1024,1,1) lds={k2.K2_LDS}\n"
out+='.amdgcn_target "amdgcn-amd-amdhsa--gfx950"\n.text\n'
descs=""
bad=False
for name,g in (("prep_kernel",k1.gen_k1),("main_kernel",k2.gen_k2)):
    a=Asm(); a.stamps=bool(os.environ.get('STAMPS')); a._lbl=1000*len(descs); g(a)
    errs=check(a.lines)
    for e in errs: print(name,e); bad=True
    nv,ns=maxregs(a.lines)
    print(name,"vgpr",nv,"sgpr",ns,"lines",len(a.lines))
    out+=f".globl {name}\n.p2align 8\n.type {name},@function\n"+a.text()
    descs+=".p2align 6\n"+desc(name,nv,ns)
out+='.section .rodata,"a"\n'+descs
dst=sys.argv[1] if len(sys.argv)>1 else 'standalone__molecular_angular_painn__graph.s'
open(dst,'w').write(out)
if bad: sys.exit(1)
```

```python
import re

class Asm:
    def __init__(self):
        self.lines = []
        self._lbl = 0
    def __call__(self, s):
        for ln in s.strip().split("\n"):
            ln = ln.strip()
            if ln:
                self.lines.append(ln)
    def label(self, name):
        self.lines.append(name + ":")
    def newlabel(self, base="L"):
        self._lbl += 1
        return f"{base}_{self._lbl}"
    def nop(self, n):
        while n > 0:
            k = min(n, 16)
            self(f"s_nop {k-1}")
            n -= k
    stamps=False
    def stamp(self, slot, tmp):
        if not self.stamps: return
        self(f"s_memrealtime s[{tmp}:{tmp+1}]")
        self("s_waitcnt lgkmcnt(0)")
        self(f"s_mov_b32 s{slot}, s{tmp}")
    def dump_stamps(self, slots, srd, base, widx_sgpr, vt, st):
        if not self.stamps: return
        self("s_mov_b64 exec, -1")
        self(f"v_mbcnt_lo_u32_b32 v{vt}, -1, 0")
        self(f"v_mbcnt_hi_u32_b32 v{vt}, -1, v{vt}")
        self(f"v_lshlrev_b32 v{vt}, 2, v{vt}")
        self(f"v_mov_b32 v{vt+1}, 0")
        for i,sl in enumerate(slots):
            self(f"v_writelane_b32 v{vt+1}, s{sl}, {i}")
        self(f"s_lshl_b32 s{st}, s{widx_sgpr}, 6")
        self(f"s_add_u32 s{st}, s{st}, {base}")
        self("s_mov_b64 exec, 0x7fff")
        self(f"buffer_store_dword v{vt+1}, v{vt}, s[{srd}:{srd+3}], s{st} offen")
    def text(self):
        out = []
        for ln in self.lines:
            if ln.endswith(":") or ln.startswith("."):
                out.append(ln)
            else:
                out.append("    " + ln)
        return "\n".join(out) + "\n"

def v(i, n=1):
    return f"v{i}" if n == 1 else f"v[{i}:{i+n-1}]"
def s(i, n=1):
    return f"s{i}" if n == 1 else f"s[{i}:{i+n-1}]"

_REG = re.compile(r"\b([vs])(\d+)\b|\b([vs])\[(\d+):(\d+)\]|\b(vcc|exec|m0|scc)\b")
def regs_of(tok):
    out = set()
    for m in _REG.finditer(tok):
        if m.group(1):
            out.add((m.group(1), int(m.group(2))))
        elif m.group(3):
            for r in range(int(m.group(4)), int(m.group(5)) + 1):
                out.add((m.group(3), r))
        else:
            out.add((m.group(6), 0))
    return out

TRANS = ("v_exp_f32", "v_log_f32", "v_rcp_f32", "v_rsq_f32", "v_sqrt_f32", "v_sin_f32", "v_cos_f32")
class Ins:
    def __init__(self, text):
        self.text = text
        t = text.split(";")[0].strip()
        parts = t.split(None, 1)
        self.op = parts[0]
        rest = parts[1] if len(parts) > 1 else ""
        ops = [x.strip() for x in rest.split(",")] if rest else []
        self.ops = ops
        op = self.op
        self.valu = op.startswith("v_") and not op.startswith("v_mfma")
        self.mfma = op.startswith("v_mfma")
        self.vmem = op.startswith("buffer_") or op.startswith("global_")
        self.ds = op.startswith("ds_")
        self.salu = op.startswith("s_")
        self.dpp = "_dpp" in op or "row_" in rest or "quad_perm" in rest
        self.trans = any(op.startswith(x) for x in TRANS)
        self.swap = op.startswith("v_permlane")
        self.w = set(); self.r = set()
        self.srcc = set(); self.srcab = set()
        self.states = 1
        if op == "s_nop":
            self.states = int(ops[0], 0) + 1
        R = [regs_of(o.split(" ")[0] if not o.startswith(("v[", "s[")) else o.split(" ")[0]) for o in ops]
        if self.mfma:
            self.w = R[0]; self.srcab = R[1] | R[2]; self.srcc = R[3]; self.r = self.srcab | self.srcc
            self.passes = 8 if "32x32" in op else 4
        elif self.valu:
            if op.startswith("v_cmp"):
                self.w = R[0]; self.r = set().union(*R[1:])
            elif self.swap:
                self.w = R[0] | R[1]; self.r = R[0] | R[1]
            elif op.startswith(("v_add_co", "v_sub_co", "v_addc_co", "v_subb_co")):
                self.w = R[0] | R[1]; self.r = set().union(*R[2:])
            else:
                self.w = R[0]; self.r = set().union(*R[1:]) if len(R) > 1 else set()
                if op.startswith(("v_fmac", "v_dot2c")) or self.dpp or "v_writelane" in op:
                    self.r |= R[0]
                if op.startswith("v_cndmask") and len(ops) == 3:
                    self.r |= {("vcc", 0)}
        elif self.vmem and not R:
            pass
        elif self.vmem:
            lds = rest.strip().endswith(" lds") or " lds " in rest
            self.lds = lds
            if "load" in op and not lds:
                self.w = R[0]; self.r = set().union(*R[1:])
            else:
                self.r = set().union(*R)
                self.store_data = R[0] if "store" in op else set()
                if lds: self.r |= {("m0", 0)}
        elif self.ds:
            if op.startswith(("ds_read", "ds_bpermute", "ds_permute", "ds_swizzle")) or "_rtn" in op:
                self.w = R[0]; self.r = set().union(*R[1:])
            else:
                self.r = set().union(*R)
        elif self.salu:
            if op.startswith(("s_cmp", "s_cbranch", "s_branch", "s_waitcnt", "s_barrier", "s_nop", "s_endpgm", "s_setprio", "s_bitcmp", "s_sleep")):
                self.r = set().union(*R) if R else set()
            else:
                self.w = R[0] if R else set(); self.r = set().union(*R[1:]) if len(R) > 1 else set()
                if "saveexec" in op: self.w |= {("exec", 0)}

def vg(x): return {r for r in x if r[0] == "v"}
def sg(x): return {r for r in x if r[0] in ("s", "vcc")}

def need(p, c):
    n = 0
    if p.valu:
        wv = vg(p.w); ws = sg(p.w)
        if wv:
            if c.valu and c.dpp and (wv & regs_of(c.ops[1].split(" ")[0])): n = max(n, 2)
            if c.swap and (wv & c.r): n = max(n, 2)
            if c.mfma and (wv & c.r): n = max(n, 2)
            if c.op.startswith(("v_readlane", "v_readfirstlane")) and (wv & c.r): n = max(n, 1)
            if p.trans and c.valu and not c.trans and (wv & c.r): n = max(n, 1)
            if p.trans and (c.vmem or c.ds) and (wv & c.r): n = max(n, 1)
        if ws:
            if c.vmem and (ws & c.r): n = max(n, 5)
            if c.valu and (ws & c.r):
                n = max(n, 4 if c.op.startswith(("v_readlane", "v_writelane")) else 2)
    if p.mfma:
        k = {4: 8, 8: 12}[p.passes]
        if c.mfma:
            if p.w & c.srcab: n = max(n, k)
            if p.w & c.srcc and not (p.w == c.srcc and p.passes == c.passes): n = max(n, k - 2)
            if (p.w & c.w) and not (p.w == c.srcc): n = max(n, k - 2)
        elif c.valu or c.vmem or c.ds:
            if p.w & (c.r | c.w): n = max(n, k)
            if c.valu and (p.srcc & c.w): n = max(n, {4: 3, 8: 7}[p.passes])
    if p.vmem and getattr(p, "store_data", None) and ("x3" in p.op or "x4" in p.op):
        if (c.valu or c.mfma) and (p.store_data & c.w): n = max(n, 2)
        elif p.store_data & c.w: n = max(n, 1)
    if p.salu and ("m0", 0) in p.w and c.vmem and getattr(c, "lds", False): n = max(n, 1)
    return n

def check(lines):
    ins = []; labels = {}
    for ln in lines:
        if ln.startswith(".") or ln.startswith(";"): continue
        if ln.endswith(":"):
            labels[ln[:-1]] = len(ins); continue
        ins.append(Ins(ln))
    def succ(i):
        I = ins[i]
        if I.op == "s_endpgm": return []
        if I.op == "s_branch": return [labels[I.ops[0]]]
        if I.op.startswith("s_cbranch"): return [i + 1, labels[I.ops[0]]]
        return [i + 1]
    errs = []
    for i, p in enumerate(ins):
        if not (p.valu or p.mfma or p.vmem or p.salu): continue
        maxd = 12 if p.mfma else 5
        seen = {}
        stack = [(j, 0) for j in succ(i)]
        while stack:
            j, d = stack.pop()
            if j >= len(ins) or d >= maxd: continue
            if j in seen and seen[j] <= d: continue
            seen[j] = d
            c = ins[j]
            nn = need(p, c)
            if nn > d:
                errs.append(f"hazard: need {nn} have {d}: [{i}] {p.text}  ->  [{j}] {c.text}")
            for k in succ(j): stack.append((k, d + c.states))
    return errs

def maxregs(lines):
    mv = ms = -1
    for ln in lines:
        if ln.startswith(".") or ln.endswith(":"): continue
        for k, r in regs_of(ln.split(";")[0]):
            if k == "v": mv = max(mv, r)
            if k == "s": ms = max(ms, r)
    return mv + 1, ms + 1
```

```python
N=12500; E=400000
NB=196; NBIN=64; NQ=49
PW=60; EPW=6668; NTW=196
TROW=256; TSZ=N*TROW
WS_TV=0; WS_TS=4*TSZ
WS_LUT=16000000; LUT_ROWS=2016; LUT_BYTES=LUT_ROWS*32; DBASE=0x38C0; DCUT=0x40A0
WS_OFF=WS_LUT+65536
WS_REC=WS_OFF+65536; RECW=EPW*12
WS_CARRY=20971520
assert WS_REC+PW*RECW<=WS_CARRY and RECW%16==0
BIG=0x40000000
K1_WAVES=16
KNAME="standalone__molecular_angular_painn__graph_kernel"
CTR_A=0; CTR_T=64; CTR_L=96; NLW=32
WS_FLG=WS_OFF+32768
```

```python
from asmlib import *
from consts import *
import os
STF=os.environ.get('STF','sc1')
K1X=os.environ.get('K1X','')
LDF=os.environ.get('LDF','')
COMP=True

W2L=0; W1L=102400; HL=139264; K1_LDS=HL+16384
CNT1=0; POSL=256; STG=POSL+75*1024-1024+256+768
STG=POSL+74*1024
assert STG%16==0 and STG+RECW<=K1_LDS+4096
K1_LDS=max(K1_LDS,STG+RECW)

def srd(a, d, b, size):
    a(f"s_mov_b32 s{d}, s{b}")
    a(f"s_and_b32 s{d+1}, s{b+1}, 0xffff")
    a(f"s_mov_b32 s{d+2}, {size}")
    a(f"s_mov_b32 s{d+3}, 0x00020000")

def gen_k1(a):
    sSV,sPOS,sSRC,sDST,sFR,sW1,sW2,sWS = 36,40,44,48,52,56,60,64
    def fin():
        if a.stamps:
            a("s_waitcnt vmcnt(0)")
            a.stamp(80,70)
            a("s_lshl_b32 s5, s2, 4"); a("s_add_u32 s5, s5, s3")
            a.dump_stamps(range(72,81),sWS,WS_CARRY+(2<<20),5,60,5)
        a("s_endpgm")
    a.label("prep_kernel")
    a(f"s_cmp_ge_u32 s2, {PW+NTW}")
    a("s_cbranch_scc1 P_END")
    a.stamp(72,70)
    a("s_load_dwordx16 s[16:31], s[0:1], 0")
    a("s_load_dwordx2 s[32:33], s[0:1], 80")
    a("v_lshrrev_b32 v1, 6, v0")
    a("v_and_b32 v2, 63, v0")
    a("v_readfirstlane_b32 s3, v1")
    a("v_lshlrev_b32 v3, 4, v0")
    a("s_waitcnt lgkmcnt(0)")
    srd(a,sSV,16,N*1024); srd(a,sPOS,18,N*6); srd(a,sSRC,20,E*4); srd(a,sDST,22,E*4)
    srd(a,sFR,24,32); srd(a,sW1,26,32768); srd(a,sW2,28,98304); srd(a,sWS,32,WS_CARRY+(4<<20))
    a(f"s_cmp_ge_u32 s2, {PW}")
    a("s_cbranch_scc1 P_TWG")
    SRC=4; DST=12
    NQ4=EPW//4
    a(f"s_mul_i32 s5, s2, {EPW*4}")
    a(f"v_add_u32 v20, s5, v3")
    a(f"v_add_u32 v21, 16384, v20")
    a(f"buffer_load_dwordx4 {v(SRC,4)}, v20, {s(sSRC,4)}, 0 offen {LDF}")
    a(f"buffer_load_dwordx4 {v(DST,4)}, v20, {s(sDST,4)}, 0 offen {LDF}")
    a(f"s_mov_b32 s34, {E*4}")
    a(f"s_add_u32 s35, s5, {EPW*4}")
    a(f"s_min_u32 s35, s35, s34")
    a(f"v_cmp_gt_u32 s[6:7], s35, v20")
    a(f"v_cmp_gt_u32 s[68:69], s35, v21")
    NW1=(NQ4-1024+63)//64
    a(f"s_cmp_ge_u32 s3, {NW1}")
    a("s_cbranch_scc1 P_A1")
    a(f"buffer_load_dwordx4 {v(SRC+4,4)}, v21, {s(sSRC,4)}, 0 offen {LDF}")
    a(f"buffer_load_dwordx4 {v(DST+4,4)}, v21, {s(sDST,4)}, 0 offen {LDF}")
    a.label("P_A1")
    a("s_lshl_b32 s34, s3, 10")
    a(f"s_add_u32 s34, s34, {POSL}")
    for it in range(5):
        if it==4:
            a(f"s_cmp_ge_u32 s3, {74-64}")
            a("s_cbranch_scc1 P_A2")
        a(f"s_add_u32 m0, s34, {it*16384}")
        a(f"s_mov_b32 s5, {it*16384}")
        a(f"buffer_load_dwordx4 v3, {s(sPOS,4)}, s5 offen lds")
    a.label("P_A2")
    a("v_lshlrev_b32 v22, 2, v2")
    a("v_mov_b32 v23, 0")
    a(f"ds_write_b32 v22, v23 offset:{CNT1}")
    a("v_mov_b32 v23, 1")
    a("s_mov_b32 s5, 0x322bcc77")
    a(f"s_movk_i32 s34, {DCUT}")
    a(f"s_movk_i32 s35, {NB}")
    a("s_waitcnt vmcnt(0) lgkmcnt(0)")
    a.stamp(73,70)
    a("s_barrier")
    a.stamp(74,70)
    REC=24; BINR=48; RANK=56; POS=64; SH=80; T=88
    msk=lambda e: f"s[{84+2*e}:{85+2*e}]"
    def unpack_pos(e, o):
        lo,hi=POS+2*e,POS+2*e+1
        a(f"v_alignbit_b32 v{o+1}, v{hi}, v{lo}, v{SH+e}")
        a(f"v_lshrrev_b32 v{o+2}, v{SH+e}, v{hi}")
        a(f"v_lshlrev_b32 v{o}, 16, v{o+1}")
        a(f"v_and_b32 v{o+1}, 0xffff0000, v{o+1}")
        a(f"v_lshlrev_b32 v{o+2}, 16, v{o+2}")
    def round3(x, t):
        a(f"v_cvt_pk_bf16_f32 v{t}, v{x}, v{x+1}")
        a(f"v_cvt_pk_bf16_f32 v{x+2}, v{x+2}, v{x+2}")
        a(f"v_lshlrev_b32 v{x}, 16, v{t}")
        a(f"v_and_b32 v{x+1}, 0xffff0000, v{t}")
        a(f"v_and_b32 v{x+2}, 0xffff0000, v{x+2}")
    def round1(x):
        a(f"v_cvt_pk_bf16_f32 v{x}, v{x}, v{x}")
        a(f"v_and_b32 v{x}, 0xffff0000, v{x}")
    for rnd in range(2):
        if rnd==1:
            for e in range(4,8): a(f"s_mov_b64 {msk(e)}, 0")
            a(f"s_cmp_ge_u32 s3, {NW1}")
            a("s_cbranch_scc1 P_A3")
        vm = "s[6:7]" if rnd==0 else "s[68:69]"
        for k in range(4):
            for w,base in ((0,SRC),(1,DST)):
                e=2*k+w
                a(f"v_mul_u32_u24 v{T}, 6, v{base+4*rnd+k}")
                a(f"v_and_b32 v{T+1}, -4, v{T}")
                a(f"ds_read2_b32 {v(POS+2*e,2)}, v{T+1} offset0:{POSL//4} offset1:{POSL//4+1}")
                a(f"v_and_b32 v{T}, 2, v{T}")
                a(f"v_lshlrev_b32 v{SH+e}, 3, v{T}")
        for k in range(4):
            e=4*rnd+k
            A_=T; B_=T+3; Q=T+6; X=T+9
            a(f"s_waitcnt lgkmcnt({6-2*k})")
            unpack_pos(2*k,A_); unpack_pos(2*k+1,B_)
            for c in range(3): a(f"v_sub_f32 v{A_+c}, v{A_+c}, v{B_+c}")
            round3(A_,X)
            for c in range(3): a(f"v_mul_f32 v{Q+c}, v{A_+c}, v{A_+c}")
            round3(Q,X)
            a(f"v_add_f32 v{Q}, v{Q}, v{Q+1}")
            a(f"v_add_f32 v{Q}, v{Q}, v{Q+2}")
            round1(Q)
            a(f"v_add_f32 v{Q}, s5, v{Q}")
            round1(Q)
            a(f"v_sqrt_f32 v{Q}, v{Q}")
            a(f"v_mul_u32_u24 v{BINR+e}, 2675, v{DST+e}")
            round1(Q)
            a(f"v_rcp_f32 v{Q+1}, v{Q}")
            a(f"v_lshrrev_b32 v{Q+2}, 16, v{Q}")
            a(f"v_lshrrev_b32 v{BINR+e}, 19, v{BINR+e}")
            a(f"v_cmp_gt_u32 {msk(e)}, s34, v{Q+2}")
            a(f"v_mul_u32_u24 v{X}, s35, v{BINR+e}")
            a(f"v_lshlrev_b32 v{BINR+e}, 2, v{BINR+e}")
            a(f"s_and_b64 {msk(e)}, {msk(e)}, {vm}")
            a(f"s_mov_b64 exec, {msk(e)}")
            a(f"ds_add_rtn_u32 v{RANK+e}, v{BINR+e}, v23 offset:{CNT1}")
            a(f"s_mov_b64 exec, -1")
            for c in range(3): a(f"v_mul_f32 v{A_+c}, v{A_+c}, v{Q+1}")
            a(f"v_sub_u32 v{X}, v{DST+e}, v{X}")
            a(f"v_cvt_pk_bf16_f32 v{REC+3*e}, v{A_}, v{A_+1}")
            a(f"v_cvt_pk_bf16_f32 v{B_}, v{A_+2}, 0")
            a(f"v_lshl_or_b32 v{REC+3*e+1}, v{SRC+e}, 16, v{B_}")
            a(f"v_max_u32 v{Q+2}, {DBASE+1}, v{Q+2}")
            a(f"v_subrev_u32 v{Q+2}, {DBASE}, v{Q+2}")
            a(f"v_lshlrev_b32 v{Q+2}, 5, v{Q+2}")
            a(f"v_lshl_or_b32 v{REC+3*e+2}, v{X}, 18, v{Q+2}")
        a("s_waitcnt lgkmcnt(0)")
    a.label("P_A3")
    a.stamp(75,70)
    a("s_barrier")
    a.stamp(76,70)
    C=T; S_=T+1
    a(f"ds_read_b32 v{C}, v22 offset:{CNT1}")
    a("s_waitcnt lgkmcnt(0)")
    a(f"v_mov_b32 v{S_}, v{C}")
    for sh in (1,2,4,8):
        a.nop(2)
        a(f"v_add_u32_dpp v{S_}, v{S_}, v{S_} row_shr:{sh} row_mask:0xf bank_mask:0xf bound_ctrl:0")
    a.nop(2)
    a(f"v_add_u32_dpp v{S_}, v{S_}, v{S_} row_bcast:15 row_mask:0xa bank_mask:0xf")
    a.nop(2)
    a(f"v_add_u32_dpp v{S_}, v{S_}, v{S_} row_bcast:31 row_mask:0xc bank_mask:0xf")
    a.nop(1)
    a(f"v_readlane_b32 s34, v{S_}, 63")
    a(f"v_sub_u32 v{S_}, v{S_}, v{C}")
    for e in range(8):
        a(f"ds_bpermute_b32 v{BINR+e}, v{BINR+e}, v{S_}")
    a("s_cmp_lg_u32 s3, 15")
    a("s_cbranch_scc1 P_NOOFF")
    a(f"v_lshl_or_b32 v{C}, v{C}, 16, v{S_}")
    a(f"v_lshlrev_b32 v{T+2}, 8, v2")
    a(f"s_lshl_b32 s5, s2, 2")
    a(f"s_add_u32 s5, s5, {WS_OFF}")
    a(f"buffer_store_dword v{C}, v{T+2}, {s(sWS,4)}, s5 offen")
    a.label("P_NOOFF")
    a(f"s_mov_b32 s35, {STG}")
    for e in range(8):
        if e==4:
            a(f"s_cmp_ge_u32 s3, {NW1}")
            a("s_cbranch_scc1 P_A4")
        if e==0: a("s_waitcnt lgkmcnt(0)")
        a(f"v_add_u32 v{BINR+e}, v{BINR+e}, v{RANK+e}")
        a(f"v_mad_u32_u24 v{BINR+e}, v{BINR+e}, 12, s35")
        a(f"s_mov_b64 exec, {msk(e)}")
        a(f"ds_write2_b32 v{BINR+e}, v{REC+3*e}, v{REC+3*e+1} offset0:0 offset1:1")
        a(f"ds_write_b32 v{BINR+e}, v{REC+3*e+2} offset:8")
        a(f"s_mov_b64 exec, -1")
    a.label("P_A4")
    a("s_waitcnt lgkmcnt(0)")
    a.stamp(77,70)
    a("s_barrier")
    a.stamp(78,70)
    a("s_mul_i32 s34, s34, 12")
    a(f"s_mul_i32 s5, s2, {RECW}")
    a(f"s_add_u32 s5, s5, {WS_REC}")
    a(f"v_add_u32 v{T}, {STG}, v3")
    a(f"v_add_u32 v{T+1}, {STG+65536}, v3")
    a("s_lshl_b32 s35, s3, 10")
    NIT=(RECW+16383)//16384
    for it in range(NIT):
        a(f"s_cmp_ge_u32 s35, s34")
        a("s_cbranch_scc1 P_A5")
        if it<4: a(f"ds_read_b128 {v(24+4*(it&1),4)}, v{T} offset:{it*16384}")
        else: a(f"ds_read_b128 {v(24+4*(it&1),4)}, v{T+1} offset:{(it-4)*16384}")
        a(f"v_add_u32 v{T+2}, {it*16384}, v3")
        a(f"v_cmp_gt_u32 vcc, s34, v{T+2}")
        a("s_add_u32 s35, s35, 16384")
        a("s_mov_b64 exec, vcc")
        a("s_waitcnt lgkmcnt(0)")
        a(f"buffer_store_dwordx4 {v(24+4*(it&1),4)}, v{T+2}, {s(sWS,4)}, s5 offen {STF}")
        a("s_mov_b64 exec, -1")
    a.label("P_A5")
    a.stamp(79,70)
    fin()
    a.label("P_TWG")
    a(f"s_sub_u32 s4, s2, {PW}")
    a("s_and_b32 s6, s3, 3")
    a("s_lshr_b32 s7, s3, 2")
    WB=64
    SF=4
    VV=20
    VPOS=os.environ.get('VPOS','late')
    a("v_lshrrev_b32 v32, 4, v0")
    a("v_and_b32 v33, 15, v0")
    a("v_lshrrev_b32 v34, 4, v2")
    a("s_lshl_b32 s9, s4, 6")
    a("s_lshl_b32 s8, s6, 4")
    a("s_add_u32 s5, s9, s8")
    a("v_add_u32 v35, s5, v33")
    a("v_lshlrev_b32 v36, 10, v35")
    a("v_lshl_add_u32 v36, v34, 4, v36")
    a("s_lshl_b32 s5, s7, 6")
    a("v_add_u32 v36, s5, v36")
    def ldv():
        for j in range(3):
            a(f"buffer_load_dwordx4 {v(VV+4*j,4)}, v36, {s(sSV,4)}, 0 offen offset:{256*(1+j)} {LDF}")
    if VPOS=='first': ldv()
    a("v_add_u32 v37, s9, v32")
    a("v_lshlrev_b32 v37, 10, v37")
    a("v_xor_b32 v38, v33, v32")
    a("v_and_b32 v38, 15, v38")
    a("v_lshl_add_u32 v37, v38, 4, v37")
    a("s_lshl_b32 s5, s3, 10")
    a(f"s_add_u32 m0, s5, {HL}")
    a("s_nop 0")
    a(f"buffer_load_dwordx4 v37, {s(sSV,4)}, 0 offen {LDF} lds")
    for rb in range(2):
        a(f"s_mov_b32 s5, {rb*16384}")
        a(f"buffer_load_dwordx4 {v(WB+4*rb,4)}, v3, {s(sW1,4)}, s5 offen")
    a("v_mul_u32_u24 v37, 768, v32")
    a("v_lshl_add_u32 v37, v33, 4, v37")
    for rb in range(2):
        a(f"s_mov_b32 s5, {rb*49152}")
        for th in range(3):
            a(f"buffer_load_dwordx4 {v(WB+8+4*(rb*3+th),4)}, v37, {s(sW2,4)}, s5 offen offset:{th*256}")
    if VPOS=='mid': ldv()
    nv = 3 if VPOS=='mid' else 0
    a("v_lshlrev_b32 v38, 1, v33")
    a(f"v_cmp_gt_u32 vcc, {N}, v35")
    a("v_lshlrev_b32 v40, 8, v35")
    a("v_lshl_add_u32 v40, v34, 4, v40")
    a(f"v_mov_b32 v41, {BIG}")
    a("v_cndmask_b32 v40, v41, v40, vcc")
    a("v_and_b32 v41, 0x33, v32")
    a("v_and_b32 v42, 4, v32")
    a("v_lshl_or_b32 v41, v42, 1, v41")
    a("v_and_b32 v42, 8, v32")
    a("v_lshrrev_b32 v42, 1, v42")
    a("v_or_b32 v41, v41, v42")
    a("v_mul_u32_u24 v41, 288, v41")
    a("v_lshl_add_u32 v41, v33, 4, v41")
    a(f"v_add_u32 v41, {W1L}, v41")
    a("v_mul_u32_u24 v42, 800, v32")
    a("v_lshrrev_b32 v43, 2, v33")
    a("v_lshl_add_u32 v42, v43, 6, v42")
    a("v_and_b32 v43, 3, v33")
    a("v_lshl_add_u32 v42, v43, 3, v42")
    a("v_add_u32 v43, 51200, v42")
    a("v_and_b32 v44, 3, v2")
    a("v_bfe_u32 v45, v2, 2, 2")
    a("v_and_b32 v46, 1, v34")
    a("v_lshrrev_b32 v47, 1, v34")
    a("v_lshl_add_u32 v46, v46, 2, v45")
    a("v_lshl_add_u32 v46, v47, 4, v46")
    a("v_mul_u32_u24 v46, 288, v46")
    a("v_lshl_add_u32 v46, v44, 3, v46")
    a("s_lshl_b32 s5, s7, 6")
    a(f"s_add_u32 s8, s5, {W1L}")
    a("v_add_u32 v46, s8, v46")
    a("v_lshl_add_u32 v47, v34, 2, v45")
    a("v_mul_u32_u24 v47, 800, v47")
    a("v_lshl_add_u32 v47, v44, 3, v47")
    a("v_add_u32 v47, s5, v47")
    a("v_add_u32 v48, 51200, v47")
    a("s_lshl_b32 s8, s6, 12")
    a(f"s_add_u32 s5, s8, {W1L}")
    a("v_lshlrev_b32 v49, 4, v2")
    a("v_add_u32 v49, s5, v49")
    a("s_lshl_b32 s5, s7, 10")
    a("v_add_u32 v50, s5, v49")
    a(f"s_add_u32 s8, s8, {HL}")
    a("v_lshlrev_b32 v51, 8, v33")
    a("v_add_u32 v51, s8, v51")
    a("v_xor_b32 v52, v34, v33")
    for kk in range(4):
        a(f"v_xor_b32 v{53+kk}, {4*kk}, v52")
        a(f"v_lshl_add_u32 v{53+kk}, v{53+kk}, 4, v51")
    a(f"s_waitcnt vmcnt({6+nv})")
    for rb in range(2):
        a(f"ds_write_b128 v41, {v(WB+4*rb,4)} offset:{rb*64*288}")
    a("s_waitcnt lgkmcnt(0)")
    a.stamp(73,70)
    a("s_barrier")
    AF=96
    D=64
    D1=52
    def rd1(t, buf):
        for kk in range(4):
            for z in range(2):
                a(f"ds_read_b64_tr_b16 {v(AF+16*buf+4*kk+2*z,2)}, v46 offset:{(32*kk+8*z)*288+t*32}")
    def rd2(i, buf):
        part,zz=i>>1,i&1
        for kk in range(4):
            for z in range(2):
                base = 47 if kk<2 else 48
                a(f"ds_read_b64_tr_b16 {v(AF+16*buf+4*kk+2*z,2)}, v{base} offset:{(32*(kk&1)+16*z)*800+part*256+zz*32}")
    for kk in range(4):
        a(f"ds_read_b128 {v(SF+4*kk,4)}, v{53+kk}")
    rd1(0,0)
    if VPOS=='late': ldv(); nv=3
    a(f"buffer_load_ushort v39, v38, {s(sFR,4)}, 0 offen")
    a("s_waitcnt lgkmcnt(7)")
    rd1(1,1)
    a.stamp(74,70)
    for t in range(2):
        a(f"s_waitcnt lgkmcnt({8 if t==0 else 0})")
        for kk in range(4):
            c = "0" if kk==0 else v(D1+4*t,4)
            a(f"v_mfma_f32_16x16x32_bf16 {v(D1+4*t,4)}, {v(AF+16*t+4*kk,4)}, {v(SF+4*kk,4)}, {c}")
    a("s_barrier")
    a("s_mov_b32 s5, 0xbfb8aa3b")
    a.nop(2)
    H=4
    TMP=60
    for p in range(4):
        x0,x1=D1+2*p,D1+2*p+1
        t0,t1=TMP+2*(p&1),TMP+2*(p&1)+1
        a(f"v_cvt_pk_bf16_f32 v{x1}, v{x0}, v{x1}")
        a(f"v_lshlrev_b32 v{x0}, 16, v{x1}")
        a(f"v_and_b32 v{x1}, 0xffff0000, v{x1}")
        a(f"v_mul_f32 v{t0}, s5, v{x0}")
        a(f"v_mul_f32 v{t1}, s5, v{x1}")
        a(f"v_exp_f32 v{t0}, v{t0}")
        a(f"v_exp_f32 v{t1}, v{t1}")
        a("s_nop 0")
        a(f"v_add_f32 v{t0}, 1.0, v{t0}")
        a(f"v_add_f32 v{t1}, 1.0, v{t1}")
        a(f"v_rcp_f32 v{t0}, v{t0}")
        a(f"v_rcp_f32 v{t1}, v{t1}")
        a("s_nop 0")
        a(f"v_mul_f32 v{x0}, v{x0}, v{t0}")
        a(f"v_mul_f32 v{x1}, v{x1}, v{t1}")
        a(f"v_cvt_pk_bf16_f32 v{AF+p}, v{x0}, v{x1}")
    a(f"ds_write_b128 v50, {v(AF,4)}")
    for rb in range(2):
        a(f"s_waitcnt vmcnt({4+nv-3*rb})")
        for th in range(3):
            r=WB+8+4*(rb*3+th)
            a(f"ds_write2_b64 v{42+rb}, {v(r,2)}, {v(r+2,2)} offset0:{32*th} offset1:{32*th+4}")
    a("s_waitcnt lgkmcnt(0)")
    a.stamp(75,70)
    a("s_barrier")
    a.stamp(76,70)
    for kk in range(4):
        a(f"ds_read_b128 {v(H+4*kk,4)}, v49 offset:{kk*1024}")
    rd2(0,0)
    buf=0
    OUT=88
    a(f"s_mov_b32 s34, {WS_TS}")
    a("s_lshl_b32 s5, s7, 6")
    a("s_add_u32 s34, s34, s5")
    a(f"s_mul_i32 s35, s7, {TSZ}")
    for i in range(6):
        if i+1<6: a("s_waitcnt lgkmcnt(7)"); rd2(i+1,buf^1); a("s_waitcnt lgkmcnt(8)")
        else: a("s_waitcnt lgkmcnt(0)")
        for kk in range(4):
            c = "0" if kk==0 else v(D+4*i,4)
            a(f"v_mfma_f32_16x16x32_bf16 {v(D+4*i,4)}, {v(AF+16*buf+4*kk,4)}, {v(H+4*kk,4)}, {c}")
        buf^=1
        if i==3:
            for pp in range(4):
                a(f"v_cvt_pk_bf16_f32 v{OUT+pp}, v{D+2*pp}, v{D+2*pp+1}")
            a(f"buffer_store_dwordx4 {v(OUT,4)}, v40, {s(sWS,4)}, s34 offen {STF}")
    a.stamp(77,70)
    a("s_waitcnt vmcnt(1)")
    a.stamp(78,70)
    for pp in range(4):
        o=OUT+4*((pp+1)&1)
        x0,x1=D+8+2*pp,D+8+2*pp+1
        a(f"v_cvt_pk_bf16_f32 v{x1}, v{x0}, v{x1}")
        a(f"v_lshlrev_b32 v{x0}, 16, v{x1}")
        a(f"v_and_b32 v{x1}, 0xffff0000, v{x1}")
        for j in range(3):
            vv=VV+4*j+pp
            t0,t1=52+2*j,53+2*j
            a(f"v_lshlrev_b32 v{t0}, 16, v{vv}")
            a(f"v_and_b32 v{t1}, 0xffff0000, v{vv}")
            a(f"v_mul_f32 v{t0}, v{t0}, v{x0}")
            a(f"v_mul_f32 v{t1}, v{t1}, v{x1}")
            a(f"v_cvt_pk_bf16_f32 v{o+j}, v{t0}, v{t1}")
        a(f"v_cvt_pk_bf16_f32 v{o+3}, v{D+16+2*pp}, v{D+16+2*pp+1}")
        if COMP:
            a(f"v_and_b32 v58, 0x8000, v{o+3}")
            a(f"v_bfe_u32 v59, v{o+3}, 16, 15")
            a(f"v_lshlrev_b32 v59, 15, v59")
            a(f"v_min_u32 v58, v58, v59")
            a(f"v_lshlrev_b32 v58, 1, v58")
            a(f"v_sub_u32 v{o+3}, v{o+3}, v58")
        a(f"buffer_store_dwordx4 {v(o,4)}, v40, {s(sWS,4)}, s35 offen offset:{64*pp} {STF}")
    a(f"s_cmp_ge_u32 s4, {(LUT_ROWS+63)//64}")
    a("s_cbranch_scc1 P_NOLUT")
    a("s_lshl_b32 s5, s4, 6")
    a("v_add_u32 v52, s5, v32")
    a(f"v_add_u32 v53, {DBASE}, v52")
    a("v_lshlrev_b32 v53, 16, v53")
    def r1(x):
        a(f"v_cvt_pk_bf16_f32 v{x}, v{x}, v{x}")
        a(f"v_and_b32 v{x}, 0xffff0000, v{x}")
    a("v_mul_f32 v54, 0x40490fdb, v53"); r1(54)
    a("v_mul_f32 v54, 0x3e4ccccd, v54"); r1(54)
    a("v_mul_f32 v54, 0.15915494, v54")
    a("v_cos_f32 v54, v54")
    a("v_rcp_f32 v55, v53")
    r1(54)
    a("v_add_f32 v54, 1.0, v54"); r1(54)
    a("v_mul_f32 v54, 0.5, v54"); r1(54)
    a("v_lshlrev_b32 v39, 16, v39")
    a("v_mul_f32 v39, v39, v53"); r1(39)
    a("v_mul_f32 v39, 0.15915494, v39")
    a("v_rndne_f32 v56, v39")
    a("v_sub_f32 v39, v39, v56")
    a("v_sin_f32 v39, v39")
    a("v_cmp_ne_u32 s[8:9], 0, v52")
    r1(39)
    a("v_mul_f32 v39, v39, v55"); r1(39)
    a("v_mul_f32 v39, v39, v54")
    a("v_cvt_pk_bf16_f32 v39, v39, v39")
    a("v_cndmask_b32 v39, 0, v39, s[8:9]")
    a("v_lshl_add_u32 v38, v52, 5, v38")
    a(f"s_mov_b32 s5, {WS_LUT}")
    a(f"buffer_store_short v39, v38, {s(sWS,4)}, s5 offen")
    a.label("P_NOLUT")
    a.stamp(79,70)
    fin()
    a.label("P_END")
    a("s_endpgm")
```

```python
from asmlib import *
from consts import *
from k1 import srd
import os
EXP=os.environ.get('EXP','')

CNTL=0; INFOL=800; POOLC=1600; FLAGL=1604
LAL=2048; NBK=304; POOL=NBK-NB; RECL=LAL+NBK*64; LUTL=RECL+NBK*256; K2_LDS=LUTL+LUT_BYTES
assert K2_LDS==163840
NCH=10; WIN=16*NCH
CARRY_WG=392*512
F_FIRST,F_LAST,F_S,F_NONE=0,1,2,3

def gen_k2(a):
    t0,t1,t2,t3=4,5,6,7
    sT,sSV,sOUT,sWS,sWR=8,12,16,20,24
    sSB,sVB=28,30
    sWV,sQ,sBIN,sN0,sWIN,sNEW,sFIRST,sFLAG,sMORE,sLO,sHI=range(32,43)
    cCnt,cNode,cFl=43,44,45
    xBlk,xCnt,xNode,xFl=46,47,48,49
    nBlk,nCnt,nNode,nFl=50,51,52,53
    sK,sP2=54,55
    sPEND=56; sINFO=80
    a.label("main_kernel")
    a("s_cmp_ge_u32 s2, 256")
    a("s_cbranch_scc1 M_END")
    a.stamp(98,96)
    a("s_load_dwordx2 s[4:5], s[0:1], 0")
    a("s_load_dwordx4 s[44:47], s[0:1], 56")
    a("s_load_dwordx2 s[6:7], s[0:1], 80")
    a("v_lshrrev_b32 v1, 6, v0")
    a("s_and_b32 s3, s2, 7")
    a(f"v_readfirstlane_b32 s{sWV}, v1")
    a(f"s_and_b32 s{sQ}, s3, 3")
    a("s_lshr_b32 s3, s3, 2")
    a("s_lshl_b32 s3, s3, 5")
    a(f"s_lshr_b32 s{sBIN}, s2, 3")
    a(f"s_add_u32 s{sBIN}, s{sBIN}, s3")
    a(f"s_mul_i32 s{sN0}, s{sBIN}, {NB}")
    a(f"s_mov_b32 s{sWIN}, 0")
    a(f"s_mov_b32 s{sNEW}, 1")
    a(f"s_mov_b32 s{sFIRST}, 1")
    a(f"s_mov_b32 s{sLO}, 0x05040100")
    a(f"s_mov_b32 s{sHI}, 0x07060302")
    a("s_waitcnt lgkmcnt(0)")
    srd(a,sWS,6,WS_CARRY+256*CARRY_WG)
    srd(a,sSV,4,N*1024); srd(a,sOUT,46,N*1024); srd(a,sWR,44,16*768)
    a(f"s_mul_i32 s3, s{sQ}, {TSZ}")
    a(f"s_add_u32 s{sVB}, s6, s3")
    a(f"s_addc_u32 s{sVB+1}, s7, 0")
    a(f"s_and_b32 s{sVB+1}, s{sVB+1}, 0xffff")
    a(f"s_add_u32 s{sSB}, s6, {WS_TS}")
    a(f"s_addc_u32 s{sSB+1}, s7, 0")
    a(f"s_and_b32 s{sSB+1}, s{sSB+1}, 0xffff")
    a(f"s_mov_b32 s{sT+2}, {TSZ}")
    a(f"s_mov_b32 s{sT+3}, 0x00020000")
    a.label("M_ROUND")
    a(f"s_mov_b32 s{sT}, s{sVB}")
    a(f"s_mov_b32 s{sT+1}, s{sVB+1}")
    TID=119; LANE=118; N16=117; GAM=116; T16=107; PAIR=106; GG=105
    a(f"v_mbcnt_lo_u32_b32 v{LANE}, -1, 0")
    a(f"v_mbcnt_hi_u32_b32 v{LANE}, -1, v{LANE}")
    a(f"s_lshl_b32 s3, s{sWV}, 6")
    a(f"v_add_u32 v{TID}, s3, v{LANE}")
    a(f"v_and_b32 v{N16}, 15, v{LANE}")
    a(f"v_lshrrev_b32 v{GAM}, 4, v{TID}")
    OFFV=0
    a(f"v_lshlrev_b32 v1, 2, v{GAM}")
    a(f"s_lshl_b32 s3, s{sBIN}, 8")
    a(f"s_add_u32 s3, s3, {WS_OFF}")
    a(f"buffer_load_dword v{OFFV}, v1, {s(sWS,4)}, s3 offen")
    a(f"v_lshlrev_b32 v{T16}, 4, v{TID}")
    a(f"s_lshl_b32 s{t0}, s{sWV}, 10")
    a(f"s_add_u32 s{t0}, s{t0}, {LUTL}")
    for it in range(4):
        if it==3:
            a(f"s_cmp_eq_u32 s{sWV}, 15")
            a("s_cbranch_scc1 M_NODMA")
        a(f"s_add_u32 m0, s{t0}, {it*16384}")
        a(f"s_mov_b32 s3, {WS_LUT+it*16384}")
        a(f"buffer_load_dwordx4 v{T16}, {s(sWS,4)}, s3 offen lds")
    a.label("M_NODMA")
    WRAW=108
    a(f"v_lshrrev_b32 v{GG}, 4, v{LANE}")
    a(f"v_mul_u32_u24 v5, {4*768}, v{GG}")
    a(f"v_and_b32 v6, 3, v{N16}")
    a(f"v_lshrrev_b32 v7, 2, v{N16}")
    a(f"v_lshl_add_u32 v{PAIR}, v6, 2, v7")
    a(f"v_lshl_add_u32 v5, v{PAIR}, 2, v5")
    a(f"s_lshl_b32 s3, s{sQ}, 6")
    for r in range(4):
        a(f"buffer_load_dword v{WRAW+r}, v5, {s(sWR,4)}, s3 offen offset:{256+768*r}")
        a(f"buffer_load_dword v{WRAW+4+r}, v5, {s(sWR,4)}, s3 offen offset:{512+768*r}")
    a("v_mov_b32 v8, 0"); a("v_mov_b32 v9, 0xffff0000"); a("v_mov_b32 v10, 0"); a("v_mov_b32 v11, 0xffff0000")
    a("v_mov_b32 v12, 0"); a("v_mov_b32 v13, 0"); a("v_mov_b32 v14, 0"); a("v_mov_b32 v15, 0")
    a(f"ds_write_b128 v{T16}, v[12:15]")
    a(f"v_add_u32 v16, {RECL}, v{T16}")
    for it in range(4):
        a(f"ds_write_b128 v16, v[8:11] offset:{it*16384}")
    a(f"v_add_u32 v17, {RECL+65536}, v{T16}")
    a(f"s_cmp_ge_u32 s{sWV}, {(NBK*256-65536)//1024}")
    a("s_cbranch_scc1 M_I1")
    a("ds_write_b128 v17, v[8:11]")
    a.label("M_I1")
    assert (RECL-16384)%1024==0 and (NBK*256-65536)%1024==0
    a(f"s_cmp_ge_u32 s{sWV}, {(RECL-16384)//1024}")
    a("s_cbranch_scc1 M_I2")
    a(f"ds_write_b128 v{T16}, v[12:15] offset:16384")
    a.label("M_I2")
    SA=20; REM=24; RC=28; A4=76
    rc=lambda i: RC+4*i
    pm=lambda i: f"s[{sPEND+2*i}:{sPEND+2*i+1}]"
    a(f"v_add_u32 v17, s{sWIN}, v{N16}")
    a(f"s_mov_b32 s3, {RECW}")
    a(f"v_cmp_gt_u32 vcc, {PW}, v{GAM}")
    a("s_waitcnt vmcnt(11)")
    a.stamp(99,96)
    a(f"v_lshrrev_b32 v{REM}, 16, v{OFFV}")
    a(f"v_and_b32 v{SA}, 0xffff, v{OFFV}")
    a(f"v_add_u32 v{SA}, v{SA}, v17")
    a(f"v_cndmask_b32 v{REM}, 0, v{REM}, vcc")
    a(f"v_mul_u32_u24 v{SA}, 12, v{SA}")
    a(f"v_mad_u32_u24 v{SA}, v{GAM}, s3, v{SA}")
    a(f"v_sub_u32 v{REM}, v{REM}, v17")
    a(f"s_cmp_eq_u32 s{sNEW}, 0")
    a("s_cbranch_scc1 M_OLDWIN")
    for c in range(NCH):
        if 16*c<=64: a(f"v_cmp_lt_i32 {pm(c)}, {16*c}, v{REM}")
        else:
            a(f"v_cmp_lt_i32 vcc, {16*c}, v{REM}")
            a(f"s_mov_b64 {pm(c)}, vcc")
    a(f"v_cmp_lt_i32 vcc, {WIN}, v{REM}")
    a("s_cmp_lg_u64 vcc, 0")
    a(f"s_cselect_b32 s{sMORE}, 2, 0")
    a.label("M_OLDWIN")
    a(f"s_mov_b32 s3, {WS_REC}")
    def each_slot(body, tag):
        for i in range(NCH):
            L=a.newlabel(tag)
            a(f"s_mov_b64 exec, {pm(i)}")
            a(f"s_cbranch_execz {L}")
            body(i)
            a.label(L)
        a("s_mov_b64 exec, -1")
    each_slot(lambda i: a(f"buffer_load_dwordx3 {v(rc(i),3)}, v{SA}, {s(sWS,4)}, s3 offen offset:{192*i}"), "M_LD")
    a("v_mov_b32 v16, 1")
    a("v_mov_b32 v17, 2")
    a("s_waitcnt lgkmcnt(0)")
    a("s_barrier")
    a.stamp(100,96)
    a("s_waitcnt vmcnt(0)")
    a.stamp(101,96)
    def rank(i):
        a(f"v_lshlrev_b32_sdwa v{A4+i}, v17, v{rc(i)+2} dst_sel:DWORD dst_unused:UNUSED_PAD src0_sel:DWORD src1_sel:WORD_1")
        a(f"ds_add_rtn_u32 v{rc(i)+3}, v{A4+i}, v16 offset:{CNTL}")
    each_slot(rank,"M_RK")
    a("s_waitcnt lgkmcnt(0)")
    def place(i):
        a(f"v_cmp_gt_u32 vcc, 32, v{rc(i)+3}")
        a(f"v_lshl_add_u32 v18, v{A4+i}, 3, v{rc(i)+3}")
        a(f"s_andn2_b64 {pm(i)}, exec, vcc")
        a(f"v_lshlrev_b32 v19, 3, v18")
        a(f"v_lshlrev_b32 v18, 1, v18")
        a(f"s_mov_b64 exec, vcc")
        a(f"ds_write_b64 v19, {v(rc(i),2)} offset:{RECL}")
        a(f"ds_write_b16 v18, v{rc(i)+2} offset:{LAL}")
    each_slot(place,"M_PL")
    a("s_waitcnt lgkmcnt(0)")
    a("s_barrier")
    a.stamp(53,96)
    a(f"s_cmp_ge_u32 s{sWV}, 4")
    a("s_cbranch_scc1 M_NOALLOC")
    a(f"v_lshlrev_b32 v18, 2, v{TID}")
    a(f"v_cmp_gt_u32 vcc, {NB}, v{TID}")
    a("s_mov_b64 exec, vcc")
    a(f"ds_read_b32 v19, v18 offset:{CNTL}")
    a(f"v_mov_b32 v20, {POOL}")
    a(f"v_mov_b32 v21, {POOLC}")
    a("s_waitcnt lgkmcnt(0)")
    a("v_cmp_lt_u32 vcc, 32, v19")
    a("s_and_saveexec_b64 s[0:1], vcc")
    a("ds_add_rtn_u32 v20, v21, v16")
    a("s_mov_b64 exec, s[0:1]")
    a("s_waitcnt lgkmcnt(0)")
    a(f"v_cmp_gt_u32 vcc, {POOL}, v20")
    a(f"v_add_u32 v20, {NB}, v20")
    a("v_min_u32 v21, 64, v19")
    a("v_lshl_or_b32 v21, v20, 8, v21")
    a("v_min_u32 v19, 32, v19")
    a("v_cndmask_b32 v19, v19, v21, vcc")
    a(f"ds_write_b32 v18, v19 offset:{INFOL}")
    a("s_mov_b64 exec, -1")
    a("s_waitcnt lgkmcnt(0)")
    a.label("M_NOALLOC")
    a("s_barrier")
    def place2(i):
        a(f"ds_read_b32 v18, v{A4+i} offset:{INFOL}")
        a("s_waitcnt lgkmcnt(0)")
        a("v_and_b32 v19, 0xff, v18")
        a(f"v_cmp_lt_u32 vcc, v{rc(i)+3}, v19")
        a("v_lshrrev_b32 v18, 8, v18")
        a(f"v_and_b32 v19, 31, v{rc(i)+3}")
        a(f"s_andn2_b64 {pm(i)}, exec, vcc")
        a("v_lshl_add_u32 v18, v18, 5, v19")
        a("v_lshlrev_b32 v19, 3, v18")
        a("v_lshlrev_b32 v18, 1, v18")
        a("s_mov_b64 exec, vcc")
        a(f"ds_write_b64 v19, {v(rc(i),2)} offset:{RECL}")
        a(f"ds_write_b16 v18, v{rc(i)+2} offset:{LAL}")
    each_slot(place2,"M_P2")
    a(f"s_or_b64 s[0:1], {pm(0)}, {pm(1)}")
    for i in range(2,NCH): a(f"s_or_b64 s[0:1], s[0:1], {pm(i)}")
    a("s_cselect_b32 s3, 1, 0")
    a(f"s_or_b32 s3, s3, s{sMORE}")
    a("s_cbranch_scc0 M_NOFLAG")
    a("v_mov_b32 v18, s3")
    a(f"v_mov_b32 v19, {FLAGL}")
    a("ds_or_b32 v19, v18")
    a.label("M_NOFLAG")
    a(f"v_lshlrev_b32 v18, 4, v{LANE}")
    a(f"v_add_u32 v18, s{sWV}, v18")
    a(f"s_mul_i32 s3, s{sQ}, {NQ}")
    a(f"s_sub_u32 s3, s3, {NB}")
    a(f"v_add_u32 v19, s3, v18")
    a(f"v_cmp_gt_u32 vcc, {NB}, v18")
    a(f"v_mov_b32 v21, {1<<26}")
    a(f"s_sub_u32 s3, {N}, s{sN0}")
    a(f"v_cndmask_b32 v19, v19, v18, vcc")
    a(f"v_cndmask_b32 v21, v21, 0, vcc")
    a(f"v_min_u32 v19, {NB-1}, v19")
    a(f"v_lshlrev_b32 v20, 2, v19")
    a(f"ds_read_b32 v22, v20 offset:{INFOL}")
    a(f"v_cmp_gt_u32 vcc, s3, v19")
    a(f"v_lshl_or_b32 v21, v19, 17, v21")
    a(f"v_mov_b32 v23, {1<<25}")
    a(f"v_cndmask_b32 v23, 0, v23, vcc")
    a(f"v_or_b32 v21, v21, v23")
    a(f"v_cmp_gt_u32 vcc, {NB+NQ}, v18")
    a(f"v_mov_b32 v23, {1<<27}")
    a("s_waitcnt lgkmcnt(0)")
    a("v_or_b32 v21, v21, v22")
    a("v_cndmask_b32 v21, v23, v21, vcc")
    a("s_barrier")
    if a.stamps: a("s_mov_b32 s56, s53")
    a.stamp(57,96)
    a(f"v_mov_b32 v19, {FLAGL}")
    a("ds_read_b32 v18, v19")
    for k in range(16):
        a(f"v_readlane_b32 s{sINFO+k}, v21, {k}")
    G=0; F=32; Y=56; DW=64; X=80; WV=88; WR=96; A=100; R=104; AP=108; TU=108; LW=112; SRCW=116; TA=117; TA2=118; SVR=119
    PLA,PLAP,PR,PSRC,C8,C8P,C16,VOUT=range(120,128)
    a(f"v_bfe_u32 v20, v{LANE}, 2, 2")
    a(f"v_lshlrev_b32 v{PLA}, 3, v20")
    a(f"v_lshl_add_u32 v{PLA}, v{GG}, 1, v{PLA}")
    a(f"v_lshlrev_b32 v{PR}, 2, v{PLA}")
    a(f"v_and_b32 v22, 3, v{LANE}")
    a(f"v_lshlrev_b32 v{PLAP}, 3, v22")
    a(f"v_add_u32 v{C8}, {LUTL}, v{PLAP}")
    a(f"v_lshl_add_u32 v{PLAP}, v20, 1, v{PLAP}")
    a(f"v_and_b32 v22, 7, v{LANE}")
    a(f"v_lshlrev_b32 v{PSRC}, 5, v22")
    a(f"v_lshl_add_u32 v{PSRC}, v{GG}, 3, v{PSRC}")
    a(f"v_lshlrev_b32 v{C8P}, 3, v{GG}")
    a(f"v_add_u32 v{C8P}, {LUTL}, v{C8P}")
    a(f"v_lshlrev_b32 v{C16}, 4, v{N16}")
    a(f"v_lshlrev_b32 v{VOUT}, 8, v{GG}")
    a(f"v_lshl_add_u32 v{VOUT}, v{PAIR}, 2, v{VOUT}")
    a(f"s_lshl_b32 s3, s{sQ}, 6")
    a(f"s_add_u32 s3, s3, 256")
    a(f"v_add_u32 v{VOUT}, s3, v{VOUT}")
    a(f"v_cmp_gt_u32 vcc, 48, v{LANE}")
    a(f"v_mov_b32 v22, {BIG}")
    for r in range(4):
        a(f"v_lshlrev_b32 v{WV+r}, 16, v{WRAW+r}")
        a(f"v_and_b32 v{WV+4+r}, 0xffff0000, v{WRAW+r}")
    a(f"v_cndmask_b32 v{VOUT}, v22, v{VOUT}, vcc")
    for r in range(4):
        a(f"v_lshlrev_b32 v{24+r}, 16, v{WRAW+4+r}")
        a(f"v_and_b32 v{28+r}, 0xffff0000, v{WRAW+4+r}")
    for r in range(8): a(f"v_mul_f32 v{24+r}, 0x3e800000, v{24+r}")
    for k in range(4): a(f"v_cvt_pk_bf16_f32 v{WR+k}, v{24+2*k}, v{25+2*k}")
    a("s_waitcnt lgkmcnt(0)")
    a(f"v_readfirstlane_b32 s{sFLAG}, v18")
    for r in list(range(0,64))+list(range(A,A+8)): a(f"v_mov_b32 v{r}, 0")
    a(f"s_mov_b32 s{sK}, 0")
    a(f"s_mov_b32 s{sP2}, 0")
    a(f"s_mov_b32 s{nNode}, 0")

    def next_desc():
        L2=a.newlabel("M_ND2"); LE=a.newlabel("M_NDE")
        a(f"s_cmp_lg_u32 s{sP2}, 0")
        a(f"s_cbranch_scc1 {L2}")
        a(f"s_min_u32 m0, s{sK}, 15")
        a(f"s_cmp_gt_u32 s{sK}, 15")
        a(f"s_movrels_b32 s{t0}, s{sINFO}")
        a(f"s_cselect_b32 s{t0}, {1<<27}, s{t0}")
        a(f"s_add_u32 s{sK}, s{sK}, 1")
        a(f"s_bfe_u32 s{nNode}, s{t0}, 0x80011")
        a(f"s_mov_b32 s{nBlk}, s{nNode}")
        a(f"s_and_b32 s{nCnt}, s{t0}, 0xff")
        a(f"s_lshr_b32 s{nFl}, s{t0}, 24")
        a(f"s_or_b32 s{nFl}, s{nFl}, 1")
        a(f"s_cmp_le_u32 s{nCnt}, 32")
        a(f"s_cbranch_scc1 {LE}")
        a(f"s_mov_b32 s{sP2}, s{t0}")
        a(f"s_mov_b32 s{nCnt}, 32")
        a(f"s_andn2_b32 s{nFl}, s{nFl}, 2")
        a(f"s_branch {LE}")
        a.label(L2)
        a(f"s_bfe_u32 s{nBlk}, s{sP2}, 0x90008")
        a(f"s_and_b32 s{nCnt}, s{sP2}, 0xff")
        a(f"s_sub_u32 s{nCnt}, s{nCnt}, 32")
        a(f"s_lshr_b32 s{nFl}, s{sP2}, 24")
        a(f"s_andn2_b32 s{nFl}, s{nFl}, 1")
        a(f"s_mov_b32 s{sP2}, 0")
        a.label(LE)
    def raw_reads(full):
        a(f"s_lshl_b32 s{t0}, s{nBlk}, 6")
        a(f"s_lshl_b32 s{t1}, s{nBlk}, 8")
        a(f"v_add_u32 v{TA}, s{t0}, v{PLA}")
        a(f"ds_read_u16 v{LW}, v{TA} offset:{LAL}")
        a(f"ds_read_u16 v{LW+1}, v{TA} offset:{LAL+32}")
        a(f"v_add_u32 v{TA2}, s{t1}, v{PSRC}")
        a(f"ds_read_u16 v{SRCW}, v{TA2} offset:{RECL+6}")
        if full:
            a(f"v_add_u32 v{TA}, s{t0}, v{PLAP}")
            a(f"ds_read_u16 v{LW+2}, v{TA} offset:{LAL}")
            a(f"ds_read_u16 v{LW+3}, v{TA} offset:{LAL+32}")
    def rotate():
        a(f"s_mov_b32 s{cCnt}, s{xCnt}"); a(f"s_mov_b32 s{cNode}, s{xNode}"); a(f"s_mov_b32 s{cFl}, s{xFl}")
        a(f"s_mov_b32 s{xBlk}, s{nBlk}"); a(f"s_mov_b32 s{xCnt}, s{nCnt}"); a(f"s_mov_b32 s{xNode}, s{nNode}"); a(f"s_mov_b32 s{xFl}, s{nFl}")
    def gathers():
        LE=a.newlabel("M_GE")
        for i in range(8):
            a(f"s_cmp_le_u32 s{xCnt}, {4*i}")
            a(f"s_cbranch_scc1 {LE}")
            ta = TA if i%2==0 else TA2
            a(f"v_add_u32_dpp v{ta}, v{SRCW}, v{C16} row_newbcast:{i} row_mask:0xf bank_mask:0xf")
            if 'nog' not in EXP: a(f"buffer_load_dwordx4 {v(G+4*i,4)}, v{ta}, {s(sT,4)}, 0 offen")
        a.label(LE)
    def node_off(dst, node):
        a(f"s_add_u32 s{dst}, s{sN0}, s{node}")
        a(f"s_min_u32 s{dst}, s{dst}, {N-1}")
        a(f"s_lshl_b32 s{dst}, s{dst}, 10")
    def sv_load(node):
        node_off(t2,node)
        if 'nosv' in EXP: a(f"s_mov_b32 s{t2}, 0")
        a(f"buffer_load_dword v{SVR}, v{VOUT}, {s(sSV,4)}, s{t2} offen")
    def finish(Z0,Z1,kind,Ltop,Ltop0,Lexit_check):
        LS=a.newlabel("M_SLOW"); LB=a.newlabel("M_BACK"); LC=a.newlabel("M_NOC"); LN=a.newlabel("M_NOST")
        a(f"s_xor_b32 s{t0}, s{sFIRST}, 1")
        a(f"s_or_b32 s{t0}, s{t0}, s{sFLAG}")
        a(f"s_cbranch_scc1 {LS}")
        a.label(LB)
        a(f"v_lshlrev_b32 v{TA}, 16, v{SVR}")
        a(f"v_and_b32 v{TA2}, 0xffff0000, v{SVR}")
        a(f"v_add_f32 v{Z0}, v{Z0}, v{TA}")
        a(f"v_add_f32 v{Z1}, v{Z1}, v{TA2}")
        node_off(t2,cNode)
        a(f"v_cvt_pk_bf16_f32 v{Z0}, v{Z0}, v{Z1}")
        if 'nost' in EXP: a(f"buffer_load_dword v{SVR}, v{VOUT}, {s(sSV,4)}, 0 offen")
        else: a(f"buffer_store_dword v{Z0}, v{VOUT}, {s(sOUT,4)}, s{t2} offen")
        sv_load(xNode)
        rotate()
        Lexit_check(Ltop)
        a.label(LS)
        a(f"v_mbcnt_lo_u32_b32 v{TA}, -1, 0")
        a(f"v_mbcnt_hi_u32_b32 v{TA}, -1, v{TA}")
        a(f"v_lshlrev_b32 v{TA}, 2, v{TA}")
        a(f"s_mul_i32 s{t2}, s2, {CARRY_WG}")
        a(f"s_lshl_b32 s{t3}, s{cNode}, 9")
        a(f"s_add_u32 s{t2}, s{t2}, s{t3}")
        a(f"s_add_u32 s{t2}, s{t2}, {WS_CARRY+kind*NB*512}")
        a(f"s_cmp_lg_u32 s{sFIRST}, 0")
        a(f"s_cbranch_scc1 {LC}")
        a(f"buffer_load_dword v{TA2}, v{TA}, {s(sWS,4)}, s{t2} offen sc1")
        a("s_waitcnt vmcnt(0)")
        a(f"v_add_f32 v{Z0}, v{Z0}, v{TA2}")
        a(f"buffer_load_dword v{TA2}, v{TA}, {s(sWS,4)}, s{t2} offen offset:256 sc1")
        a("s_waitcnt vmcnt(0)")
        a(f"v_add_f32 v{Z1}, v{Z1}, v{TA2}")
        a.label(LC)
        a(f"s_cmp_eq_u32 s{sFLAG}, 0")
        a(f"s_cbranch_scc1 {LB}")
        a(f"buffer_store_dword v{Z0}, v{TA}, {s(sWS,4)}, s{t2} offen")
        a(f"buffer_store_dword v{Z1}, v{TA}, {s(sWS,4)}, s{t2} offen offset:256")
        rotate()
        Lexit_check(Ltop0)

    next_desc()
    raw_reads(True)
    sv_load(nNode)
    a(f"s_mov_b32 s{xCnt}, 0"); a(f"s_mov_b32 s{xNode}, 0"); a(f"s_mov_b32 s{xFl}, 1")
    rotate()
    a.stamp(58,96)
    if a.stamps:
        a("s_memtime s[96:97]"); a("s_waitcnt lgkmcnt(0)"); a("s_mov_b32 s63, s96")
    a("s_branch V_MID")
    a.label("V_TOP0")
    a("s_waitcnt vmcnt(0)")
    a.label("V_TOP")
    a("s_waitcnt vmcnt(2)")
    for p in range(4):
        if p>0:
            a(f"s_cmp_le_u32 s{cCnt}, {8*p}")
            a("s_cbranch_scc1 V_MID")
        Ga,Gb=G+8*p,G+8*p+4
        h=p>>1; r=(2*p)&3
        d0=DW+(2*h)*4+r; d1=DW+(2*h+1)*4+r
        a(f"v_lshlrev_b32 v{TU}, 16, v{Ga+3}")
        a(f"v_and_b32 v{TU+1}, 0xffff0000, v{Ga+3}")
        a(f"v_lshlrev_b32 v{TU+2}, 16, v{Gb+3}")
        a(f"v_and_b32 v{TU+3}, 0xffff0000, v{Gb+3}")
        ms=[f"v_mul_f32 v{d0}, v{d0}, v{TU}", f"v_mul_f32 v{d1}, v{d1}, v{TU+1}",
            f"v_mul_f32 v{d0+1}, v{d0+1}, v{TU+2}", f"v_mul_f32 v{d1+1}, v{d1+1}, v{TU+3}"]
        for j in range(3):
            a(f"v_perm_b32 v{F+(2*j)*4+p}, v{Gb+j}, v{Ga+j}, s{sLO}")
            a(ms[j])
            a(f"v_perm_b32 v{F+(2*j+1)*4+p}, v{Gb+j}, v{Ga+j}, s{sHI}")
        a(ms[3])
        a(f"v_cvt_pk_bf16_f32 v{Y+p}, v{d0}, v{d0+1}")
        a(f"v_cvt_pk_bf16_f32 v{Y+4+p}, v{d1}, v{d1+1}")
    a.label("V_MID")
    a("s_waitcnt vmcnt(0) lgkmcnt(0)")
    a(f"s_bitcmp1_b32 s{xFl}, {F_S}")
    a(f"v_lshlrev_b32 v{SRCW}, 8, v{SRCW}")
    a(f"s_cselect_b32 s{sT}, s{sSB}, s{sT}")
    a(f"s_cselect_b32 s{sT+1}, s{sSB+1}, s{sT+1}")
    a(f"v_add_u32 v{LW+2}, v{LW+2}, v{C8P}")
    a(f"v_add_u32 v{LW+3}, v{LW+3}, v{C8P}")
    a(f"ds_read_b64 {v(AP,2)}, v{LW+2}")
    a(f"ds_read_b64 {v(AP+2,2)}, v{LW+3}")
    gathers()
    a(f"s_bitcmp1_b32 s{cFl}, {F_FIRST}")
    a("s_cbranch_scc0 V_ACC")
    for t in range(2): a(f"v_mfma_f32_16x16x32_bf16 {v(X+4*t,4)}, {v(R,4)}, {v(Y+4*t,4)}, 0")
    a.label("V_ACCB")
    def MD(k): a(f"v_mfma_f32_16x16x32_bf16 {v(DW+4*(k&3),4)}, {v(A,4)}, {v(F+4*k,4)}, 0")
    def post(k):
        j,t=k>>1,k&1
        for r in range(4): a(f"v_fmac_f32 v{X+4*t+j}, v{DW+4*(k&3)+r}, v{WV+4*t+r}")
    for k in range(4): MD(k)
    a(f"s_lshl_b32 s{t1}, s{xBlk}, 8")
    a(f"v_add_u32 v{TA}, s{t1}, v{PR}")
    a(f"ds_read_b64_tr_b16 {v(R,2)}, v{TA} offset:{RECL}")
    a(f"ds_read_b64_tr_b16 {v(R+2,2)}, v{TA} offset:{RECL+128}")
    a(f"v_add_u32 v{LW}, v{LW}, v{C8}")
    a(f"v_add_u32 v{LW+1}, v{LW+1}, v{C8}")
    post(0); MD(4); post(1); MD(5)
    a(f"ds_read_b64_tr_b16 {v(A,2)}, v{LW}")
    a(f"ds_read_b64_tr_b16 {v(A+2,2)}, v{LW+1}")
    post(2); post(3); post(4); post(5)
    a("s_waitcnt lgkmcnt(4)")
    for h in range(2):
        for t in range(2):
            a(f"v_mfma_f32_16x16x16_bf16 {v(DW+(2*h+t)*4,4)}, {v(AP+2*h,2)}, {v(WR+2*t,2)}, 0")
    next_desc()
    raw_reads(True)
    def vexit(L):
        a(f"s_and_b32 s{t0}, s{cFl}, {(1<<F_S)|(1<<F_NONE)}")
        a(f"s_cbranch_scc0 {L}")
        a("s_branch S_START")
    a(f"s_bitcmp1_b32 s{cFl}, {F_LAST}")
    a("s_cbranch_scc1 V_EPI")
    rotate()
    vexit("V_TOP0")
    a.label("V_ACC")
    for t in range(2): a(f"v_mfma_f32_16x16x32_bf16 {v(X+4*t,4)}, {v(R,4)}, {v(Y+4*t,4)}, {v(X+4*t,4)}")
    a("s_branch V_ACCB")
    a.label("V_EPI")
    for t in range(2):
        a(f"v_permlane32_swap_b32 v{X+4*t}, v{X+4*t+2}")
        a(f"v_permlane32_swap_b32 v{X+4*t+1}, v{X+4*t+3}")
    for t in range(2):
        a(f"v_add_f32 v{X+4*t}, v{X+4*t}, v{X+4*t+2}")
        a(f"v_add_f32 v{X+4*t+1}, v{X+4*t+1}, v{X+4*t+3}")
    a(f"v_permlane16_swap_b32 v{X}, v{X+1}")
    a("s_nop 0")
    a(f"v_permlane16_swap_b32 v{X+4}, v{X+5}")
    a(f"v_add_f32 v{X}, v{X}, v{X+1}")
    a(f"v_add_f32 v{X+4}, v{X+4}, v{X+5}")
    finish(X,X+4,0,"V_TOP","V_TOP0",vexit)
    FS=32; WS_=64; CAR=[96,97,98,99,104,105,106,107]
    a.label("S_START")
    a.stamp(59,96)
    a(f"s_bitcmp1_b32 s{cFl}, {F_NONE}")
    a("s_cbranch_scc1 M_DONE")
    a(f"v_mbcnt_lo_u32_b32 v{TA}, -1, 0")
    a(f"v_mbcnt_hi_u32_b32 v{TA}, -1, v{TA}")
    a(f"v_lshrrev_b32 v{TA}, 4, v{TA}")
    a(f"v_lshl_add_u32 v{VOUT}, v{TA}, 2, v{C16}")
    a(f"v_mul_u32_u24 v{TA}, {4*768}, v{TA}")
    a(f"v_add_u32 v{TA}, v{TA}, v{C16}")
    for r in range(4):
        a(f"buffer_load_dwordx4 {v(FS+4*r,4)}, v{TA}, {s(sWR,4)}, 0 offen offset:{768*r}")
    sv_load(cNode)
    a("s_waitcnt vmcnt(0)")
    for r in range(4):
        for d in range(4):
            a(f"v_lshlrev_b32 v{WS_+(2*d)*4+r}, 16, v{FS+4*r+d}")
            a(f"v_and_b32 v{WS_+(2*d+1)*4+r}, 0xffff0000, v{FS+4*r+d}")
    a.stamp(60,96)
    a.label("S_TOP0")
    a("s_waitcnt vmcnt(0)")
    a.label("S_TOP")
    a("s_waitcnt vmcnt(2)")
    for p in range(4):
        Ga,Gb=G+8*p,G+8*p+4
        for d in range(4):
            a(f"v_perm_b32 v{FS+(2*d)*4+p}, v{Gb+d}, v{Ga+d}, s{sLO}")
            a(f"v_perm_b32 v{FS+(2*d+1)*4+p}, v{Gb+d}, v{Ga+d}, s{sHI}")
    a("s_waitcnt vmcnt(0) lgkmcnt(0)")
    a(f"v_lshlrev_b32 v{SRCW}, 8, v{SRCW}")
    a(f"v_add_u32 v{LW}, v{LW}, v{C8}")
    a(f"v_add_u32 v{LW+1}, v{LW+1}, v{C8}")
    gathers()
    for k in range(8):
        a(f"v_mfma_f32_16x16x32_bf16 {v(FS+4*k,4)}, {v(A,4)}, {v(FS+4*k,4)}, 0")
    a(f"ds_read_b64_tr_b16 {v(A,2)}, v{LW}")
    a(f"ds_read_b64_tr_b16 {v(A+2,2)}, v{LW+1}")
    next_desc()
    raw_reads(False)
    for k in range(8):
        a(f"v_mul_f32 v{FS+4*k}, v{FS+4*k}, v{WS_+4*k}")
        for r in range(1,4): a(f"v_fmac_f32 v{FS+4*k}, v{FS+4*k+r}, v{WS_+4*k+r}")
    a(f"s_bitcmp1_b32 s{cFl}, {F_FIRST}")
    a("s_cbranch_scc1 S_NOCAR")
    for k in range(8): a(f"v_add_f32 v{FS+4*k}, v{FS+4*k}, v{CAR[k]}")
    a.label("S_NOCAR")
    def sexit(L):
        a(f"s_bitcmp1_b32 s{cFl}, {F_NONE}")
        a(f"s_cbranch_scc0 {L}")
        a("s_branch M_DONE")
    a(f"s_bitcmp1_b32 s{cFl}, {F_LAST}")
    a("s_cbranch_scc1 S_EPI")
    for k in range(8): a(f"v_mov_b32 v{CAR[k]}, v{FS+4*k}")
    rotate()
    sexit("S_TOP0")
    a.label("S_EPI")
    ac=lambda k: FS+4*k
    for k in range(4): a(f"v_permlane32_swap_b32 v{ac(k)}, v{ac(k+4)}")
    for k in range(4): a(f"v_add_f32 v{ac(k)}, v{ac(k)}, v{ac(k+4)}")
    a("s_nop 0")
    a(f"v_permlane16_swap_b32 v{ac(0)}, v{ac(2)}")
    a(f"v_permlane16_swap_b32 v{ac(1)}, v{ac(3)}")
    a(f"v_add_f32 v{ac(0)}, v{ac(0)}, v{ac(2)}")
    a(f"v_add_f32 v{ac(1)}, v{ac(1)}, v{ac(3)}")
    finish(ac(0),ac(1),1,"S_TOP","S_TOP0",sexit)
    a.label("M_DONE")
    if a.stamps:
        a.stamp(61,96)
        a("s_memtime s[96:97]"); a("s_waitcnt lgkmcnt(0)"); a("s_mov_b32 s64, s96")
        a("s_waitcnt vmcnt(0)")
        a.stamp(62,96)
        a(f"s_lshl_b32 s3, s2, 4"); a(f"s_add_u32 s3, s3, s{sWV}")
        a.dump_stamps([98,99,100,101,56,57,58,59,60,61,62,63,64],sWS,WS_CARRY,3,0,3)
        a("s_mov_b64 exec, -1")
    a(f"s_cmp_eq_u32 s{sFLAG}, 0")
    a("s_cbranch_scc1 M_END")
    a("s_waitcnt vmcnt(0) lgkmcnt(0)")
    a("s_barrier")
    a(f"s_mov_b32 s{sFIRST}, 0")
    a(f"s_bitcmp1_b32 s{sFLAG}, 0")
    a(f"s_cselect_b32 s{sNEW}, 0, 1")
    a(f"s_cselect_b32 s3, 0, {WIN}")
    a(f"s_add_u32 s{sWIN}, s{sWIN}, s3")
    a("s_branch M_ROUND")
    a.label("M_END")
    a("s_endpgm")
```

```python
from asmlib import *
from consts import *
from k1 import srd, COMP
import os
EXP=os.environ.get('EXP','')
GI=int(os.environ.get('GI','1'))

CNTL=0; CLAIML=784; POOLC=788; FLAGL=792; TTL=800
NVU=NB//2; NU=NVU+NQ
LAL=2368; NBK=285; POOL=NBK-NB; RECL=LAL+(NBK*68+15)//16*16; LUTL=163840-LUT_BYTES; K2_LDS=163840
assert TTL+8*(NU+24)<=LAL and RECL+NBK*272<=LUTL and RECL%16==0
NCH=10; WIN=16*NCH
CARRY_WG=392*512
F_VALID,F_S,F_EX,F_FIRST,F_LAST=0,1,2,3,4
SD="dst_sel:DWORD dst_unused:UNUSED_PAD"

def gen_k2(a):
    t0,t1,t2,t3=4,5,6,7
    sT,sSV,sOUT,sWS,sWR=8,12,16,20,24
    sSB,sVB=28,30
    sWV,sQ,sBIN,sN0,sWIN,sNEW,sFIRST,sFLAG,sMORE,sLO,sHI=range(32,43)
    cCnt,cNode,cFl=43,44,45
    xBlk,xCnt,xNode,xFl=46,47,48,49
    nBlk,nCnt,nNode,nFl=50,51,52,53
    sP2,sSLOW=54,55
    sPEND=56
    sWA,sWB,sNEED,sEND=76,77,78,79
    G=0; F=32; Y=56; DW=64; XA=80; XB=88; WV=96; WR=104; A=108; R=112; LWA=116; LWP=117; SVD=118; SVS=119
    PLA,PLAP,PSRC,C8,C8P,C16,VO1,VO2=range(120,128)
    SRCW=XA+3; CLM=XA+7; TA=XB+3; TA2=XB+7

    a.label("main_kernel")
    a("s_cmp_ge_u32 s2, 256")
    a("s_cbranch_scc1 M_END")
    a.stamp(84,96)
    a("s_load_dwordx2 s[4:5], s[0:1], 0")
    a("s_load_dwordx4 s[44:47], s[0:1], 56")
    a("s_load_dwordx2 s[6:7], s[0:1], 80")
    a("v_lshrrev_b32 v1, 6, v0")
    a("s_and_b32 s3, s2, 7")
    a(f"v_readfirstlane_b32 s{sWV}, v1")
    a(f"s_and_b32 s{sQ}, s3, 3")
    a("s_lshr_b32 s3, s3, 2")
    a("s_lshl_b32 s3, s3, 5")
    a(f"s_lshr_b32 s{sBIN}, s2, 3")
    a(f"s_add_u32 s{sBIN}, s{sBIN}, s3")
    a(f"s_mul_i32 s{sN0}, s{sBIN}, {NB}")
    a(f"s_mov_b32 s{sWIN}, 0")
    a(f"s_mov_b32 s{sNEW}, 1")
    a(f"s_mov_b32 s{sFIRST}, 1")
    a(f"s_mov_b32 s{sLO}, 0x05040100")
    a(f"s_mov_b32 s{sHI}, 0x07060302")
    a("s_waitcnt lgkmcnt(0)")
    srd(a,sWS,6,WS_CARRY+256*CARRY_WG)
    srd(a,sSV,4,N*1024); srd(a,sOUT,46,N*1024); srd(a,sWR,44,16*768)
    a(f"s_mul_i32 s3, s{sQ}, {TSZ}")
    a(f"s_add_u32 s{sVB}, s6, s3")
    a(f"s_addc_u32 s{sVB+1}, s7, 0")
    a(f"s_and_b32 s{sVB+1}, s{sVB+1}, 0xffff")
    a(f"s_add_u32 s{sSB}, s6, {WS_TS}")
    a(f"s_addc_u32 s{sSB+1}, s7, 0")
    a(f"s_and_b32 s{sSB+1}, s{sSB+1}, 0xffff")
    a(f"s_mov_b32 s{sT+2}, {TSZ}")
    a(f"s_mov_b32 s{sT+3}, 0x00020000")
    a.label("M_ROUND")
    a(f"s_mov_b32 s{sT}, s{sVB}")
    a(f"s_mov_b32 s{sT+1}, s{sVB+1}")
    TID=95; LANE=94; N16=93; GAM=92; T16=91; PAIR=90; GG=89
    a(f"v_mbcnt_lo_u32_b32 v{LANE}, -1, 0")
    a(f"v_mbcnt_hi_u32_b32 v{LANE}, -1, v{LANE}")
    a(f"s_lshl_b32 s3, s{sWV}, 6")
    a(f"v_add_u32 v{TID}, s3, v{LANE}")
    a(f"v_lshrrev_b32 v{GAM}, 4, v{TID}")
    OFFV=0
    a(f"v_lshlrev_b32 v1, 2, v{GAM}")
    a(f"s_lshl_b32 s3, s{sBIN}, 8")
    a(f"s_add_u32 s3, s3, {WS_OFF}")
    a(f"buffer_load_dword v{OFFV}, v1, {s(sWS,4)}, s3 offen")
    a(f"v_and_b32 v{N16}, 15, v{LANE}")
    a(f"v_lshlrev_b32 v{T16}, 4, v{TID}")
    WRAW=108
    a(f"v_lshrrev_b32 v{GG}, 4, v{LANE}")
    a(f"v_mul_u32_u24 v5, {4*768}, v{GG}")
    a(f"v_and_b32 v6, 3, v{N16}")
    a(f"v_lshrrev_b32 v7, 2, v{N16}")
    a(f"v_lshl_add_u32 v{PAIR}, v6, 2, v7")
    a(f"v_lshl_add_u32 v5, v{PAIR}, 2, v5")
    a(f"s_lshl_b32 s3, s{sQ}, 6")
    for r in range(4):
        a(f"buffer_load_dword v{WRAW+r}, v5, {s(sWR,4)}, s3 offen offset:{256+768*r}")
        a(f"buffer_load_dword v{WRAW+4+r}, v5, {s(sWR,4)}, s3 offen offset:{512+768*r}")
    a("v_mov_b32 v8, 0"); a("v_mov_b32 v9, 0xffff0000"); a("v_mov_b32 v10, 0"); a("v_mov_b32 v11, 0xffff0000")
    a("v_mov_b32 v12, 0"); a("v_mov_b32 v13, 0"); a("v_mov_b32 v14, 0"); a("v_mov_b32 v15, 0")
    a(f"ds_write_b128 v{T16}, v[12:15]")
    a(f"v_add_u32 v16, {RECL}, v{T16}")
    for it in range(4):
        a(f"ds_write_b128 v16, v[8:11] offset:{it*16384}")
    a(f"v_add_u32 v17, {RECL+65536}, v{T16}")
    a(f"v_cmp_gt_u32 vcc, {(LUTL-RECL-65536)//16}, v{TID}")
    a("s_mov_b64 exec, vcc")
    a("ds_write_b128 v17, v[8:11]")
    a(f"v_cmp_gt_u32 vcc, {(RECL-16384)//16}, v{TID}")
    a("s_mov_b64 exec, vcc")
    a(f"ds_write_b128 v{T16}, v[12:15] offset:16384")
    a("s_mov_b64 exec, -1")
    SA=20; REM=21; RC=32; A4=72
    rc=lambda i: RC+4*i
    pm=lambda i: f"s[{sPEND+2*i}:{sPEND+2*i+1}]"
    a(f"v_add_u32 v17, s{sWIN}, v{N16}")
    a(f"s_mov_b32 s3, {RECW}")
    a(f"v_cmp_gt_u32 vcc, {PW}, v{GAM}")
    a("s_waitcnt vmcnt(8)")
    a.stamp(85,96)
    a(f"v_lshrrev_b32 v{REM}, 16, v{OFFV}")
    a(f"v_and_b32 v{SA}, 0xffff, v{OFFV}")
    a(f"v_add_u32 v{SA}, v{SA}, v17")
    a(f"v_cndmask_b32 v{REM}, 0, v{REM}, vcc")
    a(f"v_mul_u32_u24 v{SA}, 12, v{SA}")
    a(f"v_mad_u32_u24 v{SA}, v{GAM}, s3, v{SA}")
    a(f"v_sub_u32 v{REM}, v{REM}, v17")
    a(f"s_cmp_eq_u32 s{sNEW}, 0")
    a("s_cbranch_scc1 M_OLDWIN")
    for c in range(NCH):
        if 16*c<=64: a(f"v_cmp_lt_i32 {pm(c)}, {16*c}, v{REM}")
        else:
            a(f"v_cmp_lt_i32 vcc, {16*c}, v{REM}")
            a(f"s_mov_b64 {pm(c)}, vcc")
    a(f"v_cmp_lt_i32 vcc, {WIN}, v{REM}")
    a("s_cmp_lg_u64 vcc, 0")
    a(f"s_cselect_b32 s{sMORE}, 2, 0")
    a.label("M_OLDWIN")
    a(f"s_mov_b32 s3, {WS_REC}")
    def each_slot(body, tag):
        for i in range(NCH):
            L=a.newlabel(tag)
            a(f"s_mov_b64 exec, {pm(i)}")
            a(f"s_cbranch_execz {L}")
            body(i)
            a.label(L)
        a("s_mov_b64 exec, -1")
    each_slot(lambda i: a(f"buffer_load_dwordx3 {v(rc(i),3)}, v{SA}, {s(sWS,4)}, s3 offen offset:{192*i}"), "M_LD")
    a(f"s_lshl_b32 s{t0}, s{sWV}, 10")
    a(f"s_add_u32 s{t0}, s{t0}, {LUTL}")
    for it in range(4):
        a(f"s_mov_b32 s3, {WS_LUT+it*16384}")
        if it==3:
            a(f"s_cmp_eq_u32 s{sWV}, 15")
            a(f"s_cselect_b32 s{t1}, 1024, 0")
            a(f"s_sub_u32 s{t0}, s{t0}, s{t1}")
            a(f"s_sub_u32 s3, s3, s{t1}")
        a(f"s_add_u32 m0, s{t0}, {it*16384}")
        a("s_nop 0")
        a(f"buffer_load_dwordx4 v{T16}, {s(sWS,4)}, s3 offen lds")
    nyoung=4
    if 'touch' in EXP:
        a(f"s_lshr_b32 s3, s2, 3")
        a(f"s_mul_i32 s3, s3, {782*128}")
        a(f"v_lshlrev_b32 v1, 7, v{TID}")
        a(f"v_add_u32 v1, s3, v1")
        a(f"v_cmp_gt_u32 vcc, 782, v{TID}")
        a(f"v_mov_b32 v2, {BIG}")
        a(f"v_lshrrev_b32 v3, 2, v{TID}")
        a(f"v_cndmask_b32 v1, v2, v1, vcc")
        a(f"buffer_load_dword v82, v1, {s(sT,4)}, 0 offen")
        a(f"v_and_b32 v4, 3, v{TID}")
        a(f"v_lshlrev_b32 v5, 10, v3")
        a(f"v_lshl_add_u32 v5, v4, 8, v5")
        a(f"s_lshr_b32 s3, s{sQ}, 1")
        a(f"s_lshl_b32 s3, s3, 7")
        a(f"s_add_u32 s3, s3, 256")
        a(f"v_add_u32 v5, s3, v5")
        a(f"v_lshrrev_b32 v6, 1, v3")
        a(f"s_mul_i32 s3, s{sQ}, {NQ}")
        a(f"v_add_u32 v6, s3, v6")
        a(f"v_lshlrev_b32 v6, 10, v6")
        a(f"v_and_b32 v7, 1, v3")
        a(f"v_lshl_add_u32 v6, v7, 7, v6")
        a(f"v_cmp_gt_u32 vcc, {2*NQ}, v3")
        a(f"v_cmp_eq_u32 s[0:1], 3, v4")
        a(f"s_lshl_b32 s3, s{sN0}, 10")
        a(f"v_cndmask_b32 v6, v2, v6, vcc")
        a(f"v_cmp_gt_u32 vcc, {NB}, v3")
        a(f"v_cndmask_b32 v5, v5, v6, s[0:1]")
        a(f"v_add_u32 v5, s3, v5")
        a(f"v_cndmask_b32 v5, v2, v5, vcc")
        a(f"buffer_load_dword v84, v5, {s(sSV,4)}, 0 offen")
        nyoung+=2
    a(f"v_bfe_u32 v22, v{LANE}, 2, 2")
    a(f"v_lshlrev_b32 v{PLA}, 4, v22")
    a(f"v_lshl_add_u32 v{PLA}, v{GG}, 2, v{PLA}")
    a(f"v_and_b32 v23, 3, v{LANE}")
    a(f"v_lshlrev_b32 v{C8}, 3, v23")
    a(f"v_add_u32 v{C8}, {LUTL}, v{C8}")
    a(f"v_lshlrev_b32 v{PLAP}, 2, v{PAIR}")
    a(f"v_lshlrev_b32 v{PSRC}, 6, v23")
    a(f"v_lshl_add_u32 v{PSRC}, v{GG}, 4, v{PSRC}")
    a(f"v_and_b32 v23, 4, v{LANE}")
    a(f"v_lshl_add_u32 v{PSRC}, v23, 1, v{PSRC}")
    a(f"v_lshlrev_b32 v{C8P}, 3, v{GG}")
    a(f"v_add_u32 v{C8P}, {LUTL}, v{C8P}")
    a(f"v_lshlrev_b32 v{C16}, 4, v{N16}")
    a(f"v_lshrrev_b32 v22, 1, v{GG}")
    a(f"v_and_b32 v23, 1, v{GG}")
    a(f"v_lshlrev_b32 v{VO1}, 10, v22")
    a(f"v_lshl_add_u32 v{VO1}, v{PAIR}, 2, v{VO1}")
    a(f"s_lshl_b32 s3, s{sQ}, 6")
    a(f"s_add_u32 s3, s3, 256")
    a(f"v_add_u32 v{VO1}, s3, v{VO1}")
    a(f"v_lshl_add_u32 v{VO2}, v23, 1, v{VO1}")
    a(f"v_add_u32 v{VO2}, 512, v{VO2}")
    a(f"v_lshl_add_u32 v{VO1}, v23, 8, v{VO1}")
    a(f"v_mov_b32 v{SVS}, 0")
    a("v_mov_b32 v16, 33")
    a("s_waitcnt lgkmcnt(0)")
    a("s_barrier")
    a.stamp(86,96)
    a(f"s_waitcnt vmcnt({nyoung})")
    a.stamp(87,96)
    def rank(i):
        a(f"v_lshrrev_b32 v{A4+i}, 16, v{rc(i)+2}")
        a(f"ds_add_rtn_u32 v{rc(i)+3}, v{A4+i}, v16 offset:{CNTL}")
    each_slot(rank,"M_RK")
    for r in range(4):
        a(f"v_lshlrev_b32 v{WV+r}, 16, v{WRAW+r}")
        a(f"v_and_b32 v{WV+4+r}, 0xffff0000, v{WRAW+r}")
    for r in range(4):
        a(f"v_lshlrev_b32 v{24+r}, 16, v{WRAW+4+r}")
        a(f"v_and_b32 v{28+r}, 0xffff0000, v{WRAW+4+r}")
    for r in range(8): a(f"v_mul_f32 v{24+r}, 0x3e800000, v{24+r}")
    for k in range(4): a(f"v_cvt_pk_bf16_f32 v{WR+k}, v{24+2*k}, v{25+2*k}")
    a("s_waitcnt lgkmcnt(0)")
    def place(i):
        a(f"v_cmp_gt_u32 vcc, {32*33}, v{rc(i)+3}")
        a(f"v_bfe_u32 v18, v{rc(i)+3}, 4, 5")
        a(f"v_mul_u32_u24 v19, 17, v{A4+i}")
        a(f"s_andn2_b64 {pm(i)}, exec, vcc")
        a(f"v_lshl_add_u32 v19, v18, 1, v19")
        a(f"v_lshlrev_b32 v18, 2, v19")
        a(f"s_mov_b64 exec, vcc")
        a(f"ds_write_b64 v18, {v(rc(i),2)} offset:{RECL}")
        a(f"ds_write_b16 v19, v{rc(i)+2} offset:{LAL}")
    each_slot(place,"M_PL")
    a("s_waitcnt lgkmcnt(0)")
    a("s_barrier")
    a.stamp(88,96)
    a(f"s_cmp_ge_u32 s{sWV}, 4")
    a("s_cbranch_scc1 M_NOALLOC")
    a(f"v_lshlrev_b32 v18, 2, v{TID}")
    a(f"v_cmp_gt_u32 vcc, {NB}, v{TID}")
    a("s_mov_b64 exec, vcc")
    a(f"ds_read_b32 v19, v18 offset:{CNTL}")
    a(f"v_mov_b32 v20, {POOL}")
    a(f"v_mov_b32 v21, {POOLC}")
    a("v_mov_b32 v22, 1")
    a(f"s_sub_u32 s3, {N}, s{sN0}")
    a(f"v_cmp_gt_u32 vcc, s3, v{TID}")
    a(f"v_mov_b32 v23, {4<<8}")
    a(f"v_mov_b32 v24, {5<<8}")
    a(f"v_cndmask_b32 v23, v23, v24, vcc")
    a(f"v_or_b32 v23, v23, v{TID}")
    a("s_waitcnt lgkmcnt(0)")
    a(f"v_min_u32 v19, {64*33}, v19")
    a("v_mul_u32_u24 v19, 1986, v19")
    a("v_lshrrev_b32 v19, 16, v19")
    a("v_cmp_lt_u32 vcc, 32, v19")
    a("s_and_saveexec_b64 s[0:1], vcc")
    a("ds_add_rtn_u32 v20, v21, v22")
    a("s_mov_b64 exec, s[0:1]")
    a(f"s_mul_i32 s3, s{sQ}, {NQ}")
    a(f"v_subrev_u32 v24, s3, v{TID}")
    a("s_waitcnt lgkmcnt(0)")
    a(f"v_cmp_gt_u32 vcc, {POOL}, v20")
    a(f"v_add_u32 v20, {NB}, v20")
    a("v_min_u32 v21, 64, v19")
    a("v_lshl_or_b32 v21, v20, 7, v21")
    a("v_min_u32 v19, 32, v19")
    a("v_cndmask_b32 v19, v19, v21, vcc")
    a("v_lshl_or_b32 v19, v23, 16, v19")
    a(f"ds_write_b32 v18, v19 offset:{TTL}")
    a(f"v_cmp_gt_u32 vcc, {NQ}, v24")
    a(f"v_or_b32 v19, {1<<25}, v19")
    a("v_lshlrev_b32 v24, 3, v24")
    a("s_and_b64 exec, exec, vcc")
    a(f"ds_write_b32 v24, v19 offset:{TTL+8*NVU}")
    a("s_mov_b64 exec, -1")
    a("s_waitcnt lgkmcnt(0)")
    a.label("M_NOALLOC")
    for r in range(0,16): a(f"v_mov_b32 v{r}, 0")
    a("s_barrier")
    a(f"s_lshl_b32 s3, s{sWV}, 3")
    a(f"v_mov_b32 v20, s3")
    a(f"ds_read_b64 v[22:23], v20 offset:{TTL}")
    a(f"s_movk_i32 s{t2}, 68")
    each_slot(lambda i: a(f"ds_read_b32 v{A4+i}, v{A4+i} offset:{TTL}"),"M_P1")
    a("s_waitcnt lgkmcnt(0)")
    def place2(i):
        a(f"v_and_b32 v19, 0x7f, v{A4+i}")
        a("v_mul_u32_u24 v19, 33, v19")
        a(f"v_cmp_lt_u32 vcc, v{rc(i)+3}, v19")
        a(f"v_subrev_u32 v18, {32*33}, v{rc(i)+3}")
        a(f"v_bfe_u32 v18, v18, 4, 5")
        a(f"v_bfe_u32 v19, v{A4+i}, 7, 9")
        a(f"s_andn2_b64 {pm(i)}, exec, vcc")
        a(f"v_mul_u32_u24 v19, s{t2}, v19")
        a(f"v_lshl_add_u32 v19, v18, 1, v19")
        a(f"v_lshlrev_b32 v18, 2, v19")
        a("s_mov_b64 exec, vcc")
        a(f"ds_write_b64 v18, {v(rc(i),2)} offset:{RECL}")
        a(f"ds_write_b16 v19, v{rc(i)+2} offset:{LAL}")
    each_slot(place2,"M_P2")
    a(f"v_readfirstlane_b32 s{sWA}, v22")
    a(f"v_readfirstlane_b32 s{sWB}, v23")
    a(f"s_or_b64 s[0:1], {pm(0)}, {pm(1)}")
    for i in range(2,NCH): a(f"s_or_b64 s[0:1], s[0:1], {pm(i)}")
    a("s_cselect_b32 s3, 1, 0")
    a(f"s_or_b32 s3, s3, s{sMORE}")
    a(f"v_mov_b32 v19, {FLAGL}")
    a("s_cbranch_scc0 M_NOFLAG")
    a("v_mov_b32 v18, s3")
    a("ds_or_b32 v19, v18")
    a.label("M_NOFLAG")
    a(f"s_waitcnt vmcnt({nyoung-4}) lgkmcnt(0)")
    a("s_barrier")
    a.stamp(89,96)
    a(f"ds_read_b32 v{LWA}, v19")
    for r in list(range(16,64))+list(range(A,A+8)): a(f"v_mov_b32 v{r}, 0")
    a(f"s_mov_b32 s{sP2}, 0")
    a(f"s_mov_b32 s{sNEED}, 0")
    a(f"s_mov_b32 s{sEND}, 0")
    a("s_waitcnt lgkmcnt(0)")
    a(f"v_readfirstlane_b32 s{sFLAG}, v{LWA}")
    a(f"s_xor_b32 s{sSLOW}, s{sFIRST}, 1")
    a(f"s_or_b32 s{sSLOW}, s{sSLOW}, s{sFLAG}")

    def next_desc():
        L2=a.newlabel("M_ND2"); LE=a.newlabel("M_NDE"); LC=a.newlabel("M_NDC")
        a(f"s_cmp_lg_u32 s{sP2}, 0")
        a(f"s_cbranch_scc1 {L2}")
        a(f"s_bfe_u32 s{nNode}, s{sWA}, 0x80010")
        a(f"s_mov_b32 s{nBlk}, s{nNode}")
        a(f"s_and_b32 s{nCnt}, s{sWA}, 0x7f")
        a(f"s_lshr_b32 s{nFl}, s{sWA}, 24")
        a(f"s_cmp_gt_u32 s{nCnt}, 32")
        a(f"s_cselect_b32 s{sP2}, s{sWA}, 0")
        a(f"s_cselect_b32 s{t0}, {1<<F_FIRST}, {(1<<F_FIRST)|(1<<F_LAST)}")
        a(f"s_or_b32 s{nFl}, s{nFl}, s{t0}")
        a(f"s_min_u32 s{nCnt}, s{nCnt}, 32")
        a(f"s_mov_b32 s{sWA}, s{sWB}")
        a(f"s_mov_b32 s{sWB}, 0")
        a(f"s_or_b32 s{t0}, s{sWA}, s{sEND}")
        a(f"s_cbranch_scc1 {LE}")
        a(f"s_mov_b32 s{sNEED}, 1")
        a(f"v_mov_b32 v{TA}, {CLAIML}")
        a(f"v_mov_b32 v{TA2}, 8")
        a("s_mov_b64 exec, 1")
        a(f"ds_add_rtn_u32 v{CLM}, v{TA}, v{TA2}")
        a("s_mov_b64 exec, -1")
        a(f"s_branch {LE}")
        a.label(L2)
        a(f"s_bfe_u32 s{nBlk}, s{sP2}, 0x90007")
        a(f"s_and_b32 s{nCnt}, s{sP2}, 0x7f")
        a(f"s_sub_u32 s{nCnt}, s{nCnt}, 32")
        a(f"s_lshr_b32 s{nFl}, s{sP2}, 24")
        a(f"s_or_b32 s{nFl}, s{nFl}, {1<<F_LAST}")
        a(f"s_mov_b32 s{sP2}, 0")
        a.label(LE)
    def claim_top():
        L=a.newlabel("M_CT")
        a(f"s_cmp_eq_u32 s{sNEED}, 0")
        a(f"s_cbranch_scc1 {L}")
        a("s_waitcnt lgkmcnt(0)")
        a("s_mov_b64 exec, 1")
        a(f"ds_read_b32 v{TA}, v{CLM} offset:{TTL+128}")
        a(f"ds_read_b32 v{TA2}, v{CLM} offset:{TTL+132}")
        a("s_mov_b64 exec, -1")
        a.label(L)
    def claim_mid():
        L=a.newlabel("M_CM")
        a(f"s_cmp_eq_u32 s{sNEED}, 0")
        a(f"s_cbranch_scc1 {L}")
        a(f"v_readfirstlane_b32 s{sWA}, v{TA}")
        a(f"v_readfirstlane_b32 s{sWB}, v{TA2}")
        a(f"s_mov_b32 s{sNEED}, 0")
        a(f"s_cmp_eq_u32 s{sWA}, 0")
        a(f"s_cselect_b32 s{sEND}, 1, 0")
        a.label(L)
    def raw_reads(full):
        a(f"s_mul_i32 s{t0}, s{nBlk}, 68")
        a(f"s_lshl_b32 s{t1}, s{t0}, 2")
        a(f"v_add_u32 v{TA}, s{t0}, v{PLA}")
        a(f"ds_read_b32 v{LWA}, v{TA} offset:{LAL}")
        a(f"v_add_u32 v{TA2}, s{t1}, v{PSRC}")
        a(f"ds_read_u16 v{SRCW}, v{TA2} offset:{RECL+6}")
        if full:
            a(f"v_add_u32 v{TA}, s{t0}, v{PLAP}")
            a(f"ds_read_b32 v{LWP}, v{TA} offset:{LAL}")
    def rotate():
        a(f"s_mov_b32 s{cCnt}, s{xCnt}"); a(f"s_mov_b64 s[{cNode}:{cFl}], s[{xNode}:{xFl}]")
        a(f"s_mov_b64 s[{xBlk}:{xCnt}], s[{nBlk}:{nCnt}]"); a(f"s_mov_b64 s[{xNode}:{xFl}], s[{nNode}:{nFl}]")
    def gathers():
        LE=a.newlabel("M_GE"); LS=a.newlabel("M_GS"); LB=a.newlabel("M_GB")
        def one(i):
            ta = TA if i%2==0 else TA2
            a(f"v_add_u32_dpp v{ta}, v{SRCW}, v{C16} row_newbcast:{i} row_mask:0xf bank_mask:0xf")
            if 'nog' not in EXP: a(f"buffer_load_dwordx4 {v(G+4*i,4)}, v{ta}, {s(sT,4)}, 0 offen")
        a(f"s_cmp_le_u32 s{xCnt}, 12")
        a(f"s_cbranch_scc1 {LS}")
        for i in range(4): one(i)
        for i in range(4,8):
            a(f"s_cmp_le_u32 s{xCnt}, {4*i}")
            a(f"s_cbranch_scc1 {LE}")
            one(i)
        a.label(LE)
        def cold():
            a.label(LS)
            for i in range(3):
                a(f"s_cmp_le_u32 s{xCnt}, {4*i}")
                a(f"s_cbranch_scc1 {LE}")
                one(i)
            a(f"s_branch {LE}")
        return cold
    def gat(i):
        L=a.newlabel("M_G1")
        ta = TA if i%2==0 else TA2
        a(f"s_cmp_le_u32 s{xCnt}, {4*i}")
        a(f"s_cbranch_scc1 {L}")
        a(f"v_add_u32_dpp v{ta}, v{SRCW}, v{C16} row_newbcast:{i} row_mask:0xf bank_mask:0xf")
        if 'nog' not in EXP: a(f"buffer_load_dwordx4 {v(G+4*i,4)}, v{ta}, {s(sT,4)}, 0 offen")
        a.label(L)
    def node_off(dst, node, sub=0):
        a(f"s_add_u32 s{dst}, s{sN0}, s{node}")
        if sub: a(f"s_sub_u32 s{dst}, s{dst}, {sub}")
        a(f"s_min_u32 s{dst}, s{dst}, {N-2}")
        a(f"s_lshl_b32 s{dst}, s{dst}, 10")
    def sv_loadV(node):
        node_off(t2,node)
        a(f"buffer_load_dword v{SVD}, v{VO1}, {s(sSV,4)}, s{t2} offen")
        a(f"buffer_load_short_d16_hi v{SVS}, v{VO2}, {s(sSV,4)}, s{t2} offen")
    def carry(Zs, kind, sub, Lback, tail):
        LC=a.newlabel("M_NOC")
        a(f"v_mbcnt_lo_u32_b32 v{TA}, -1, 0")
        a(f"v_mbcnt_hi_u32_b32 v{TA}, -1, v{TA}")
        a(f"v_lshlrev_b32 v{TA}, 2, v{TA}")
        a(f"s_mul_i32 s{t2}, s2, {CARRY_WG}")
        a(f"s_lshl_b32 s{t3}, s{cNode}, 9")
        a(f"s_add_u32 s{t2}, s{t2}, s{t3}")
        a(f"s_add_u32 s{t2}, s{t2}, {WS_CARRY+kind*NB*512-sub*512}")
        a(f"s_cmp_lg_u32 s{sFIRST}, 0")
        a(f"s_cbranch_scc1 {LC}")
        for i,z in enumerate(Zs):
            a(f"buffer_load_dword v{TA2}, v{TA}, {s(sWS,4)}, s{t2} offen offset:{256*i} sc1")
            a("s_waitcnt vmcnt(0)")
            a(f"v_add_f32 v{z}, v{z}, v{TA2}")
        a.label(LC)
        a(f"s_cmp_eq_u32 s{sFLAG}, 0")
        a(f"s_cbranch_scc1 {Lback}")
        for i,z in enumerate(Zs):
            a(f"buffer_store_dword v{z}, v{TA}, {s(sWS,4)}, s{t2} offen offset:{256*i} sc1")
        tail()

    next_desc()
    raw_reads(True)
    sv_loadV(nNode)
    a(f"s_mov_b32 s{xCnt}, 0"); a(f"s_mov_b32 s{xNode}, 0"); a(f"s_mov_b32 s{xFl}, {(1<<F_FIRST)|(1<<F_LAST)}")
    rotate()
    a.stamp(90,96)
    if a.stamps:
        a("s_memtime s[96:97]"); a("s_waitcnt lgkmcnt(0)"); a("s_mov_b32 s95, s96")
    a("s_branch VB_MID")
    colds=[]
    def vexit(L):
        a(f"s_and_b32 s{t0}, s{cFl}, {(1<<F_S)|(1<<F_EX)}")
        a(f"s_cmp_eq_u32 s{t0}, {1<<F_EX}")
        a(f"s_cbranch_scc1 {L}")
        a("s_branch S_START")
    for cp,X,PT in (("A",XA,(XB+3,XB+7)),("B",XB,(XA+3,XA+7))):
        if cp=="A":
            a.label("VA_TOP0")
            a("s_waitcnt vmcnt(0)")
            a.label("VA_TOP")
            claim_top()
            a("s_waitcnt vmcnt(4) lgkmcnt(0)")
        else:
            a.label("VB_TOP0")
            claim_top()
            a("s_waitcnt vmcnt(0)")
            a.label("VB_MID")
            a("s_waitcnt lgkmcnt(0)")
        a(f"v_lshlrev_b32 v{SRCW}, 8, v{SRCW}")
        claim_mid()
        if cp=="B":
            a(f"s_bitcmp1_b32 s{xFl}, {F_S}")
            a(f"s_cselect_b32 s{sT}, s{sSB}, s{sT}")
            a(f"s_cselect_b32 s{sT+1}, s{sSB+1}, s{sT+1}")
        for p in range(4):
            LP=a.newlabel("V_NP")
            if p>0:
                a(f"s_cmp_le_u32 s{cCnt}, {8*p}")
                a(f"s_cbranch_scc1 {LP}")
            Ga,Gb=G+8*p,G+8*p+4
            h=p>>1; r=(2*p)&3
            d0=DW+(2*h)*4+r; d1=DW+(2*h+1)*4+r
            pr=[]
            for j in range(3):
                pr.append(f"v_perm_b32 v{F+(2*j)*4+p}, v{Gb+j}, v{Ga+j}, s{sLO}")
                pr.append(f"v_perm_b32 v{F+(2*j+1)*4+p}, v{Gb+j}, v{Ga+j}, s{sHI}")
            a(f"v_mul_f32 v{d1}, v{d1}, v{Ga+3}"); a(pr[0])
            a(f"v_mul_f32 v{d1+1}, v{d1+1}, v{Gb+3}"); a(pr[1])
            a(f"v_lshlrev_b32 v{Ga+3}, 16, v{Ga+3}")
            a(f"v_lshlrev_b32 v{Gb+3}, 16, v{Gb+3}")
            a(pr[2])
            if p>0 and GI==2: gat(2*p-1)
            a(f"v_mul_f32 v{d0}, v{d0}, v{Ga+3}"); a(pr[3])
            a(f"v_mul_f32 v{d0+1}, v{d0+1}, v{Gb+3}"); a(pr[4])
            a(f"v_cvt_pk_bf16_f32 v{Y+4+p}, v{d1}, v{d1+1}")
            a(pr[5])
            a(f"v_cvt_pk_bf16_f32 v{Y+p}, v{d0}, v{d0+1}")
            if GI==2 and p>0:
                LQ=a.newlabel("V_NQ")
                a(f"s_branch {LQ}")
                a.label(LP)
                gat(2*p-1)
                a.label(LQ)
            else: a.label(LP)
            gat(2*p)
            if GI==1 or p==3: gat(2*p+1)
        a(f"s_bitcmp1_b32 s{cFl}, {F_FIRST}")
        a(f"s_cbranch_scc0 V{cp}_ACC")
        for t in range(2): a(f"v_mfma_f32_16x16x32_bf16 {v(X+4*t,4)}, {v(R,4)}, {v(Y+4*t,4)}, 0")
        a.label(f"V{cp}_ACCB")
        def acc(cp=cp,X=X):
            a.label(f"V{cp}_ACC")
            for t in range(2): a(f"v_mfma_f32_16x16x32_bf16 {v(X+4*t,4)}, {v(R,4)}, {v(Y+4*t,4)}, {v(X+4*t,4)}")
            a(f"s_branch V{cp}_ACCB")
        colds.append(acc)
        def MD(k): a(f"v_mfma_f32_16x16x32_bf16 {v(DW+4*(k&3),4)}, {v(A,4)}, {v(F+4*k,4)}, 0")
        def post(k):
            j,t=k>>1,k&1
            for r in range(4): a(f"v_fmac_f32 v{X+4*t+j}, v{DW+4*(k&3)+r}, v{WV+4*t+r}")
        MD(0)
        a(f"v_add_u32_sdwa v{PT[0]}, v{LWP}, v{C8P} {SD} src0_sel:WORD_0 src1_sel:DWORD")
        MD(1)
        a(f"v_add_u32_sdwa v{PT[1]}, v{LWP}, v{C8P} {SD} src0_sel:WORD_1 src1_sel:DWORD")
        MD(2)
        a(f"ds_read_b64 {v(R,2)}, v{PT[0]}")
        a(f"ds_read_b64 {v(R+2,2)}, v{PT[1]}")
        MD(3)
        a(f"v_add_u32_sdwa v{PT[0]}, v{LWA}, v{C8} {SD} src0_sel:WORD_0 src1_sel:DWORD")
        post(0); MD(4)
        a(f"v_add_u32_sdwa v{PT[1]}, v{LWA}, v{C8} {SD} src0_sel:WORD_1 src1_sel:DWORD")
        post(1); MD(5)
        a(f"ds_read_b64_tr_b16 {v(A,2)}, v{PT[0]}")
        a(f"ds_read_b64_tr_b16 {v(A+2,2)}, v{PT[1]}")
        a(f"s_mul_i32 s{t1}, s{xBlk}, 272")
        post(2); post(3)
        a("s_waitcnt lgkmcnt(2)")
        def MW(h,t): a(f"v_mfma_f32_16x16x16_bf16 {v(DW+(2*h+t)*4,4)}, {v(R+2*h,2)}, {v(WR+2*t,2)}, 0")
        MW(1,0); MW(1,1)
        a(f"v_lshl_add_u32 v{PT[0]}, v{PLA}, 2, s{t1}")
        post(4); MW(0,0); post(5); MW(0,1)
        a(f"ds_read_b64_tr_b16 {v(R,2)}, v{PT[0]} offset:{RECL}")
        a(f"ds_read_b64_tr_b16 {v(R+2,2)}, v{PT[0]} offset:{RECL+8}")
        next_desc()
        raw_reads(True)
        a(f"s_bitcmp1_b32 s{cFl}, {F_LAST}")
        if cp=="A":
            rotate()
            a("s_cbranch_scc0 VA_TOP0")
        else:
            a("s_cbranch_scc1 V_EPI")
            rotate()
            a("s_branch VB_TOP0")
    a.label("V_EPI")
    a(f"s_bitcmp1_b32 s{cFl}, {F_VALID}")
    a("s_cbranch_scc0 V_SKIP")
    for t in range(2):
        for j in range(3): a(f"v_permlane32_swap_b32 v{XA+4*t+j}, v{XB+4*t+j}")
    for j in range(3):
        for t in range(2): a(f"v_add_f32 v{XA+4*t+j}, v{XA+4*t+j}, v{XB+4*t+j}")
    a(f"v_permlane16_swap_b32 v{XA}, v{XA+1}")
    a(f"v_permlane16_swap_b32 v{XA+4}, v{XA+5}")
    a(f"v_permlane16_swap_b32 v{XA+2}, v{XA+6}")
    Z0,Z1,Z2=XA,XA+4,XA+2
    a(f"v_add_f32 v{Z0}, v{XA}, v{XA+1}")
    a(f"v_add_f32 v{Z1}, v{XA+4}, v{XA+5}")
    a(f"v_add_f32 v{Z2}, v{XA+2}, v{XA+6}")
    a(f"s_cmp_lg_u32 s{sSLOW}, 0")
    a("s_cbranch_scc1 V_SLOW")
    a.label("V_BACK")
    a(f"v_lshlrev_b32 v{XB}, 16, v{SVD}")
    a(f"v_and_b32 v{XB+1}, 0xffff0000, v{SVD}")
    a(f"v_add_f32 v{Z2}, v{Z2}, v{SVS}")
    a(f"v_add_f32 v{Z0}, v{Z0}, v{XB}")
    a(f"v_add_f32 v{Z1}, v{Z1}, v{XB+1}")
    node_off(t2,cNode,1)
    a(f"v_cvt_pk_bf16_f32 v{Z2}, v{Z2}, v{Z2}")
    a(f"v_cvt_pk_bf16_f32 v{Z0}, v{Z0}, v{Z1}")
    a(f"buffer_store_short v{Z2}, v{VO2}, {s(sOUT,4)}, s{t2} offen")
    a(f"buffer_store_dword v{Z0}, v{VO1}, {s(sOUT,4)}, s{t2} offen")
    sv_loadV(xNode)
    rotate()
    vexit("VA_TOP")
    a.label("V_SLOW")
    a_skip=lambda: None
    carry([Z0,Z1,Z2],0,1,"V_BACK",a_skip)
    a.label("V_SKIP")
    rotate()
    vexit("VA_TOP0")
    for c in colds: c()
    colds=[]
    FS=32; WS_=64
    WSR=[64+i for i in range(16)]+[80,81,82,84,85,86,88,89,90,92,93,94]+[96,97,98,99]
    CAR=[100,101,102,103,104,105,106,107]
    def sv_loadS(node):
        a(f"s_add_u32 s{t2}, s{sN0}, s{node}")
        a(f"s_min_u32 s{t2}, s{t2}, {N-1}")
        a(f"s_lshl_b32 s{t2}, s{t2}, 10")
        a(f"buffer_load_dword v{SVD}, v{VO1}, {s(sSV,4)}, s{t2} offen")
    a.label("S_START")
    a.stamp(91,96)
    a(f"s_bitcmp1_b32 s{cFl}, {F_EX}")
    a("s_cbranch_scc0 M_DONE")
    a(f"v_mbcnt_lo_u32_b32 v{VO2}, -1, 0")
    a(f"v_mbcnt_hi_u32_b32 v{VO2}, -1, v{VO2}")
    a(f"v_lshrrev_b32 v{VO2}, 4, v{VO2}")
    a(f"v_lshl_add_u32 v{VO1}, v{VO2}, 2, v{C16}")
    a(f"v_mul_u32_u24 v{VO2}, {4*768}, v{VO2}")
    a(f"v_add_u32 v{VO2}, v{VO2}, v{C16}")
    for r in range(4):
        a(f"buffer_load_dwordx4 {v(FS+4*r,4)}, v{VO2}, {s(sWR,4)}, 0 offen offset:{768*r}")
    sv_loadS(cNode)
    a("s_waitcnt vmcnt(1)")
    for r in range(4):
        for d in range(4):
            a(f"v_lshlrev_b32 v{WSR[(2*d)*4+r]}, 16, v{FS+4*r+d}")
            a(f"v_and_b32 v{WSR[(2*d+1)*4+r]}, 0xffff0000, v{FS+4*r+d}")
    a.stamp(92,96)
    a.label("S_TOP0")
    a("s_waitcnt vmcnt(0)")
    a.label("S_TOP")
    claim_top()
    a("s_waitcnt vmcnt(1) lgkmcnt(0)")
    a(f"v_lshlrev_b32 v{SRCW}, 8, v{SRCW}")
    a(f"v_mov_b32 v{SVS}, v{SVD}")
    claim_mid()
    L=a.newlabel("S_NSV")
    a(f"s_bitcmp1_b32 s{xFl}, {F_FIRST}")
    a(f"s_cbranch_scc0 {L}")
    sv_loadS(xNode)
    a.label(L)
    for p in range(4):
        Ga,Gb=G+8*p,G+8*p+4
        for d in range(4):
            a(f"v_perm_b32 v{FS+(2*d)*4+p}, v{Gb+d}, v{Ga+d}, s{sLO}")
            a(f"v_perm_b32 v{FS+(2*d+1)*4+p}, v{Gb+d}, v{Ga+d}, s{sHI}")
        gat(2*p); gat(2*p+1)
    for k in range(8):
        a(f"v_mfma_f32_16x16x32_bf16 {v(FS+4*k,4)}, {v(A,4)}, {v(FS+4*k,4)}, 0")
        if k==2: a(f"v_add_u32_sdwa v{TA}, v{LWA}, v{C8} {SD} src0_sel:WORD_0 src1_sel:DWORD")
        if k==4: a(f"v_add_u32_sdwa v{TA2}, v{LWA}, v{C8} {SD} src0_sel:WORD_1 src1_sel:DWORD")
    a(f"ds_read_b64_tr_b16 {v(A,2)}, v{TA}")
    a(f"ds_read_b64_tr_b16 {v(A+2,2)}, v{TA2}")
    next_desc()
    raw_reads(False)
    for k in range(8):
        a(f"v_mul_f32 v{FS+4*k}, v{FS+4*k}, v{WSR[4*k]}")
        for r in range(1,4): a(f"v_fmac_f32 v{FS+4*k}, v{FS+4*k+r}, v{WSR[4*k+r]}")
    a(f"s_bitcmp1_b32 s{cFl}, {F_FIRST}")
    a("s_cbranch_scc1 S_NOCAR")
    for k in range(8): a(f"v_add_f32 v{FS+4*k}, v{FS+4*k}, v{CAR[k]}")
    a.label("S_NOCAR")
    def sexit(L):
        a(f"s_bitcmp1_b32 s{cFl}, {F_EX}")
        a(f"s_cbranch_scc1 {L}")
        a("s_branch M_DONE")
    a(f"s_and_b32 s{t0}, s{cFl}, {(1<<F_LAST)|(1<<F_VALID)}")
    a(f"s_cmp_eq_u32 s{t0}, {(1<<F_LAST)|(1<<F_VALID)}")
    a("s_cbranch_scc1 S_EPI")
    for k in range(8): a(f"v_mov_b32 v{CAR[k]}, v{FS+4*k}")
    a.label("S_SKIP")
    rotate()
    sexit("S_TOP0")
    a.label("S_EPI")
    ac=lambda k: FS+4*k
    for k in range(4): a(f"v_permlane32_swap_b32 v{ac(k)}, v{ac(k+4)}")
    for k in range(4): a(f"v_add_f32 v{ac(k)}, v{ac(k)}, v{ac(k+4)}")
    a("s_nop 0")
    a(f"v_permlane16_swap_b32 v{ac(0)}, v{ac(2)}")
    a(f"v_permlane16_swap_b32 v{ac(1)}, v{ac(3)}")
    a(f"v_add_f32 v{ac(0)}, v{ac(0)}, v{ac(2)}")
    a(f"v_add_f32 v{ac(1)}, v{ac(1)}, v{ac(3)}")
    a(f"s_cmp_lg_u32 s{sSLOW}, 0")
    a("s_cbranch_scc1 S_SLOW")
    a.label("S_BACK")
    a(f"v_lshlrev_b32 v{ac(2)}, 16, v{SVS}")
    a(f"v_and_b32 v{ac(3)}, 0xffff0000, v{SVS}")
    a(f"v_add_f32 v{ac(0)}, v{ac(0)}, v{ac(2)}")
    a(f"v_add_f32 v{ac(1)}, v{ac(1)}, v{ac(3)}")
    a(f"s_add_u32 s{t2}, s{sN0}, s{cNode}")
    a(f"s_lshl_b32 s{t2}, s{t2}, 10")
    a(f"v_cvt_pk_bf16_f32 v{ac(0)}, v{ac(0)}, v{ac(1)}")
    a(f"buffer_store_dword v{ac(0)}, v{VO1}, {s(sOUT,4)}, s{t2} offen")
    rotate()
    sexit("S_TOP")
    a.label("S_SLOW")
    carry([ac(0),ac(1)],1,0,"S_BACK",lambda: a("s_branch S_SKIP"))
    for c in colds: c()
    a.label("M_DONE")
    if a.stamps:
        a.stamp(93,96)
        a("s_memtime s[96:97]"); a("s_waitcnt lgkmcnt(0)"); a("s_mov_b32 s98, s96")
        a("s_waitcnt vmcnt(0)")
        a.stamp(94,96)
        a(f"s_lshl_b32 s3, s2, 4"); a(f"s_add_u32 s3, s3, s{sWV}")
        a.dump_stamps([84,85,86,87,88,89,90,91,92,93,94,95,98],sWS,WS_CARRY,3,0,3)
        a("s_mov_b64 exec, -1")
    a(f"s_cmp_eq_u32 s{sFLAG}, 0")
    a("s_cbranch_scc1 M_END")
    a("s_waitcnt vmcnt(0) lgkmcnt(0)")
    a("s_barrier")
    a(f"s_mov_b32 s{sFIRST}, 0")
    a(f"s_bitcmp1_b32 s{sFLAG}, 0")
    a(f"s_cselect_b32 s{sNEW}, 0, 1")
    a(f"s_cselect_b32 s3, 0, {WIN}")
    a(f"s_add_u32 s{sWIN}, s{sWIN}, s3")
    a("s_branch M_ROUND")
    a.label("M_END")
    a("s_endpgm")
```

```python
from asmlib import *
from consts import *
import os
STF=os.environ.get('STF','sc1')
K1X=os.environ.get('K1X','')
LDF=os.environ.get('LDF','')
COMP=True
PM=os.environ.get('PM','flag')

W2L=0; W1L=102400; HL=139264; K1_LDS=HL+16384
CNT1=0; POSL=256; STG=POSL+75*1024-1024+256+768
STG=POSL+74*1024
assert STG%16==0 and STG+RECW<=K1_LDS+4096
K1_LDS=max(K1_LDS,STG+RECW)

def srd(a, d, b, size):
    a(f"s_mov_b32 s{d}, s{b}")
    a(f"s_and_b32 s{d+1}, s{b+1}, 0xffff")
    a(f"s_mov_b32 s{d+2}, {size}")
    a(f"s_mov_b32 s{d+3}, 0x00020000")

def publish(a,swv,sDBG,ctr,tgt,vt):
    L=a.newlabel("P_PUB")
    a(f"s_cmp_lg_u32 s{swv}, 15")
    a(f"s_cbranch_scc1 {L}")
    a(f"v_mov_b32 v{vt}, {ctr}")
    a(f"v_mov_b32 v{vt+1}, 1")
    a("s_mov_b64 exec, 1")
    a(f"buffer_atomic_add v{vt+1}, v{vt}, {s(sDBG,4)}, 0 offen sc0")
    a("s_waitcnt vmcnt(0)")
    a(f"v_cmp_eq_u32 vcc, {tgt-1}, v{vt+1}")
    a(f"v_mov_b32 v{vt+1}, {tgt}")
    a("s_and_b64 exec, exec, vcc")
    a(f"s_cbranch_execz {L}_x")
    a(f"buffer_store_dword v{vt+1}, v{vt}, {s(sDBG,4)}, 0 offen offset:128 sc1")
    a.label(f"{L}_x")
    a("s_mov_b64 exec, -1")
    a.label(L)

def gen_k1(a):
    sSV,sPOS,sSRC,sDST,sFR,sW1,sW2,sWS,sDBG = 36,40,44,48,52,56,60,64,12
    def fin(isA):
        if isA: a("s_waitcnt vmcnt(0)")
        a.stamp(80,70)
        a("s_barrier")
        if isA: publish(a,3,sDBG,CTR_A,PW,4)
        if a.stamps:
            a("s_lshl_b32 s5, s2, 4"); a("s_add_u32 s5, s5, s3")
            a.dump_stamps(range(72,81),sWS,WS_CARRY+(2<<20),5,60,5)
            a("s_mov_b64 exec, -1")
        if isA: a("s_branch M_ENTRY")
    a.label(KNAME)
    a(f"s_cmp_ge_u32 s2, {PW+NTW}")
    a("s_cbranch_scc1 M_END")
    a.stamp(72,70)
    a("s_load_dwordx16 s[16:31], s[0:1], 0")
    a("s_load_dwordx2 s[32:33], s[0:1], 80")
    a("s_load_dwordx2 s[34:35], s[0:1], 72")
    a("v_lshrrev_b32 v1, 6, v0")
    a("v_and_b32 v2, 63, v0")
    a("v_readfirstlane_b32 s3, v1")
    a("v_lshlrev_b32 v3, 4, v0")
    a("s_waitcnt lgkmcnt(0)")
    srd(a,sSV,16,N*1024); srd(a,sPOS,18,N*6); srd(a,sSRC,20,E*4); srd(a,sDST,22,E*4)
    srd(a,sFR,24,32); srd(a,sW1,26,32768); srd(a,sW2,28,98304); srd(a,sWS,32,WS_CARRY+(4<<20)); srd(a,sDBG,34,256)
    a(f"s_cmp_ge_u32 s2, {PW}")
    a("s_cbranch_scc1 P_TWG")
    SRC=4; DST=12
    NQ4=EPW//4
    a("v_lshrrev_b32 v32, 4, v0")
    a("v_and_b32 v38, 15, v0")
    a("v_lshlrev_b32 v38, 1, v38")
    a(f"buffer_load_ushort v39, v38, {s(sFR,4)}, 0 offen")
    a(f"s_mul_i32 s5, s2, {EPW*4}")
    a(f"v_add_u32 v20, s5, v3")
    a(f"v_add_u32 v21, 16384, v20")
    a(f"buffer_load_dwordx4 {v(SRC,4)}, v20, {s(sSRC,4)}, 0 offen nt")
    a(f"buffer_load_dwordx4 {v(DST,4)}, v20, {s(sDST,4)}, 0 offen nt")
    a(f"s_mov_b32 s34, {E*4}")
    a(f"s_add_u32 s35, s5, {EPW*4}")
    a(f"s_min_u32 s35, s35, s34")
    a(f"v_cmp_gt_u32 s[6:7], s35, v20")
    a(f"v_cmp_gt_u32 s[68:69], s35, v21")
    NW1=(NQ4-1024+63)//64
    a(f"s_cmp_ge_u32 s3, {NW1}")
    a("s_cbranch_scc1 P_A1")
    a(f"buffer_load_dwordx4 {v(SRC+4,4)}, v21, {s(sSRC,4)}, 0 offen nt")
    a(f"buffer_load_dwordx4 {v(DST+4,4)}, v21, {s(sDST,4)}, 0 offen nt")
    a.label("P_A1")
    a("s_lshl_b32 s34, s3, 10")
    a(f"s_add_u32 s34, s34, {POSL}")
    for it in range(5):
        if it==4:
            a(f"s_cmp_ge_u32 s3, {74-64}")
            a("s_cbranch_scc1 P_A2")
        a(f"s_add_u32 m0, s34, {it*16384}")
        a(f"s_mov_b32 s5, {it*16384}")
        a(f"buffer_load_dwordx4 v3, {s(sPOS,4)}, s5 offen lds")
    a.label("P_A2")
    a(f"s_cmp_ge_u32 s2, {(LUT_ROWS+63)//64}")
    a("s_cbranch_scc1 P_NOLUT")
    a("s_lshl_b32 s5, s2, 6")
    a("v_add_u32 v52, s5, v32")
    a(f"v_add_u32 v53, {DBASE}, v52")
    a("v_lshlrev_b32 v53, 16, v53")
    def r1(x):
        a(f"v_cvt_pk_bf16_f32 v{x}, v{x}, v{x}")
        a(f"v_and_b32 v{x}, 0xffff0000, v{x}")
    a("v_mul_f32 v54, 0x40490fdb, v53"); r1(54)
    a("v_mul_f32 v54, 0x3e4ccccd, v54"); r1(54)
    a("v_mul_f32 v54, 0.15915494, v54")
    a("v_cos_f32 v54, v54")
    a("v_rcp_f32 v55, v53")
    r1(54)
    a("v_add_f32 v54, 1.0, v54"); r1(54)
    a("v_mul_f32 v54, 0.5, v54"); r1(54)
    a("s_waitcnt vmcnt(6)")
    a("v_lshlrev_b32 v39, 16, v39")
    a("v_mul_f32 v39, v39, v53"); r1(39)
    a("v_mul_f32 v39, 0.15915494, v39")
    a("v_rndne_f32 v56, v39")
    a("v_sub_f32 v39, v39, v56")
    a("v_sin_f32 v39, v39")
    a("v_cmp_ne_u32 s[8:9], 0, v52")
    r1(39)
    a("v_mul_f32 v39, v39, v55"); r1(39)
    a("v_mul_f32 v39, v39, v54")
    a("v_cvt_pk_bf16_f32 v39, v39, v39")
    a("v_cndmask_b32 v39, 0, v39, s[8:9]")
    a("v_lshl_add_u32 v38, v52, 5, v38")
    a(f"s_mov_b32 s5, {WS_LUT}")
    a(f"buffer_store_short v39, v38, {s(sWS,4)}, s5 offen sc1")
    a.label("P_NOLUT")
    a("v_lshlrev_b32 v22, 2, v2")
    a("v_mov_b32 v23, 0")
    a(f"ds_write_b32 v22, v23 offset:{CNT1}")
    a("v_mov_b32 v23, 1")
    a("s_mov_b32 s5, 0x322bcc77")
    a(f"s_mov_b32 s34, {DCUT<<16}")
    a(f"s_movk_i32 s35, {-NB}")
    a("s_waitcnt vmcnt(0) lgkmcnt(0)")
    a.stamp(73,70)
    a("s_barrier")
    a.stamp(74,70)
    REC=24; BINR=48; RANK=56; POS=64; SH=80; T=88
    msk=lambda e: f"s[{84+2*e}:{85+2*e}]"
    def unpack_pos(e, o):
        lo,hi=POS+2*e,POS+2*e+1
        a(f"v_alignbit_b32 v{o+1}, v{hi}, v{lo}, v{SH+e}")
        a(f"v_lshrrev_b32 v{o+2}, v{SH+e}, v{hi}")
        a(f"v_lshlrev_b32 v{o}, 16, v{o+1}")
        a(f"v_and_b32 v{o+1}, 0xffff0000, v{o+1}")
        a(f"v_lshlrev_b32 v{o+2}, 16, v{o+2}")
    def round3(x, t):
        a(f"v_cvt_pk_bf16_f32 v{t}, v{x}, v{x+1}")
        a(f"v_cvt_pk_bf16_f32 v{x+2}, v{x+2}, v{x+2}")
        a(f"v_lshlrev_b32 v{x}, 16, v{t}")
        a(f"v_and_b32 v{x+1}, 0xffff0000, v{t}")
        a(f"v_and_b32 v{x+2}, 0xffff0000, v{x+2}")
    def round1(x):
        a(f"v_cvt_pk_bf16_f32 v{x}, v{x}, v{x}")
        a(f"v_and_b32 v{x}, 0xffff0000, v{x}")
    for rnd in range(2):
        if rnd==1:
            for e in range(4,8): a(f"s_mov_b64 {msk(e)}, 0")
            a(f"s_cmp_ge_u32 s3, {NW1}")
            a("s_cbranch_scc1 P_A3")
        vm = "s[6:7]" if rnd==0 else "s[68:69]"
        def rdpos(k):
            for w,base in ((0,SRC),(1,DST)):
                a(f"v_mul_u32_u24 v{T+10+w}, 6, v{base+4*rnd+k}")
                for c in range(3):
                    a(f"ds_read_u16_d16_hi v{POS+6*k+3*w+c}, v{T+10+w} offset:{POSL+2*c}")
        rdpos(0)
        if rnd: a('s_waitcnt lgkmcnt(9)')
        rdpos(1)
        for k in range(4):
            e=4*rnd+k
            A_=POS+6*k; B_=A_+3; Q=T+6; X=T+9
            a(f"s_waitcnt lgkmcnt({6 if k<3 else 0})")
            for c in range(3): a(f"v_sub_f32 v{A_+c}, v{A_+c}, v{B_+c}")
            if k+2<4: rdpos(k+2)
            round3(A_,X)
            for c in range(3): a(f"v_mul_f32 v{Q+c}, v{A_+c}, v{A_+c}")
            round3(Q,X)
            a(f"v_add_f32 v{Q}, v{Q}, v{Q+1}")
            a(f"v_add_f32 v{Q}, v{Q}, v{Q+2}")
            round1(Q)
            a(f"v_add_f32 v{Q}, s5, v{Q}")
            round1(Q)
            a(f"v_sqrt_f32 v{Q}, v{Q}")
            a(f"v_mul_u32_u24 v{BINR+e}, 2675, v{DST+e}")
            round1(Q)
            a(f"v_rcp_f32 v{Q+1}, v{Q}")
            a(f"v_lshrrev_b32 v{BINR+e}, 19, v{BINR+e}")
            a(f"v_cmp_gt_u32 {msk(e)}, s34, v{Q}")
            a(f"v_mad_i32_i24 v{X}, v{BINR+e}, s35, v{DST+e}")
            a(f"v_lshlrev_b32 v{BINR+e}, 2, v{BINR+e}")
            a(f"s_and_b64 {msk(e)}, {msk(e)}, {vm}")
            for c in range(3): a(f"v_mul_f32 v{A_+c}, v{A_+c}, v{Q+1}")
            a(f"v_max_u32 v{Q}, {(DBASE+1)<<16}, v{Q}")
            a(f"v_cvt_pk_bf16_f32 v{REC+3*e}, v{A_}, v{A_+1}")
            a(f"v_cvt_pk_bf16_f32 v{B_}, v{A_+2}, 0")
            a(f"v_subrev_u32 v{Q}, {DBASE<<16}, v{Q}")
            a(f"v_lshl_or_b32 v{REC+3*e+1}, v{SRC+e}, 16, v{B_}")
            a(f"v_lshrrev_b32 v{Q}, 11, v{Q}")
            a(f"v_lshl_or_b32 v{REC+3*e+2}, v{X}, 18, v{Q}")
        for k in range(4):
            e=4*rnd+k
            a(f"s_mov_b64 exec, {msk(e)}")
            a(f"ds_add_rtn_u32 v{RANK+e}, v{BINR+e}, v23 offset:{CNT1}")
        a(f"s_mov_b64 exec, -1")
    a.label("P_A3")
    a("s_waitcnt lgkmcnt(0)")
    a.stamp(75,70)
    a("s_barrier")
    a.stamp(76,70)
    C=T; S_=T+1
    a(f"ds_read_b32 v{C}, v22 offset:{CNT1}")
    a("s_waitcnt lgkmcnt(0)")
    a(f"v_mov_b32 v{S_}, v{C}")
    for sh in (1,2,4,8):
        a.nop(2)
        a(f"v_add_u32_dpp v{S_}, v{S_}, v{S_} row_shr:{sh} row_mask:0xf bank_mask:0xf bound_ctrl:0")
    a.nop(2)
    a(f"v_add_u32_dpp v{S_}, v{S_}, v{S_} row_bcast:15 row_mask:0xa bank_mask:0xf")
    a.nop(2)
    a(f"v_add_u32_dpp v{S_}, v{S_}, v{S_} row_bcast:31 row_mask:0xc bank_mask:0xf")
    a.nop(1)
    a(f"v_readlane_b32 s34, v{S_}, 63")
    a(f"v_sub_u32 v{S_}, v{S_}, v{C}")
    for e in range(8):
        a(f"ds_bpermute_b32 v{BINR+e}, v{BINR+e}, v{S_}")
    a("s_cmp_lg_u32 s3, 15")
    a("s_cbranch_scc1 P_NOOFF")
    a(f"v_lshl_or_b32 v{C}, v{C}, 16, v{S_}")
    a(f"v_lshlrev_b32 v{T+2}, 8, v2")
    a(f"s_lshl_b32 s5, s2, 2")
    a(f"s_add_u32 s5, s5, {WS_OFF}")
    a(f"buffer_store_dword v{C}, v{T+2}, {s(sWS,4)}, s5 offen sc1")
    a.label("P_NOOFF")
    a(f"s_mov_b32 s35, {STG}")
    for e in range(8):
        if e==4:
            a(f"s_cmp_ge_u32 s3, {NW1}")
            a("s_cbranch_scc1 P_A4")
        if e==0: a("s_waitcnt lgkmcnt(0)")
        a(f"v_add_u32 v{BINR+e}, v{BINR+e}, v{RANK+e}")
        a(f"v_mad_u32_u24 v{BINR+e}, v{BINR+e}, 12, s35")
        a(f"s_mov_b64 exec, {msk(e)}")
        a(f"ds_write2_b32 v{BINR+e}, v{REC+3*e}, v{REC+3*e+1} offset0:0 offset1:1")
        a(f"ds_write_b32 v{BINR+e}, v{REC+3*e+2} offset:8")
        a(f"s_mov_b64 exec, -1")
    a.label("P_A4")
    a("s_waitcnt lgkmcnt(0)")
    a.stamp(77,70)
    a("s_barrier")
    a.stamp(78,70)
    a("s_mul_i32 s34, s34, 12")
    a(f"s_mul_i32 s5, s2, {RECW}")
    a(f"s_add_u32 s5, s5, {WS_REC}")
    a(f"v_add_u32 v{T}, {STG}, v3")
    a(f"v_add_u32 v{T+1}, {STG+65536}, v3")
    a("s_lshl_b32 s35, s3, 10")
    NIT=(RECW+16383)//16384
    for it in range(NIT):
        a(f"s_cmp_ge_u32 s35, s34")
        a("s_cbranch_scc1 P_A5")
        if it<4: a(f"ds_read_b128 {v(24+4*(it&1),4)}, v{T} offset:{it*16384}")
        else: a(f"ds_read_b128 {v(24+4*(it&1),4)}, v{T+1} offset:{(it-4)*16384}")
        a(f"v_add_u32 v{T+2}, {it*16384}, v3")
        a(f"v_cmp_gt_u32 vcc, s34, v{T+2}")
        a("s_add_u32 s35, s35, 16384")
        a("s_mov_b64 exec, vcc")
        a("s_waitcnt lgkmcnt(0)")
        a(f"buffer_store_dwordx4 {v(24+4*(it&1),4)}, v{T+2}, {s(sWS,4)}, s5 offen {STF}")
        a("s_mov_b64 exec, -1")
    a.label("P_A5")
    a.stamp(79,70)
    fin(True)
    a.label("P_TWG")
    a(f"s_sub_u32 s4, s2, {PW}")
    a("s_and_b32 s6, s3, 3")
    a("s_lshr_b32 s7, s3, 2")
    WB=64
    SF=4
    VV=20
    VPOS=os.environ.get('VPOS','late')
    a("v_lshrrev_b32 v32, 4, v0")
    a("v_and_b32 v33, 15, v0")
    a("v_lshrrev_b32 v34, 4, v2")
    a("s_lshl_b32 s9, s4, 6")
    a("s_lshl_b32 s8, s6, 4")
    a("s_add_u32 s5, s9, s8")
    a("v_add_u32 v35, s5, v33")
    a("v_lshlrev_b32 v36, 10, v35")
    a("v_lshl_add_u32 v36, v34, 4, v36")
    a("s_lshl_b32 s5, s7, 6")
    a("v_add_u32 v36, s5, v36")
    def ldv():
        for j in range(3):
            a(f"buffer_load_dwordx4 {v(VV+4*j,4)}, v36, {s(sSV,4)}, 0 offen offset:{256*(1+j)} {LDF}")
    if VPOS=='first': ldv()
    a("v_add_u32 v37, s9, v32")
    a("v_lshlrev_b32 v37, 10, v37")
    a("v_xor_b32 v38, v33, v32")
    a("v_and_b32 v38, 15, v38")
    a("v_lshl_add_u32 v37, v38, 4, v37")
    a("s_lshl_b32 s5, s3, 10")
    a(f"s_add_u32 m0, s5, {HL}")
    a("s_nop 0")
    a(f"buffer_load_dwordx4 v37, {s(sSV,4)}, 0 offen {LDF} lds")
    for rb in range(2):
        a(f"s_mov_b32 s5, {rb*16384}")
        a(f"buffer_load_dwordx4 {v(WB+4*rb,4)}, v3, {s(sW1,4)}, s5 offen")
    a("v_mul_u32_u24 v37, 768, v32")
    a("v_lshl_add_u32 v37, v33, 4, v37")
    for rb in range(2):
        a(f"s_mov_b32 s5, {rb*49152}")
        for th in range(3):
            a(f"buffer_load_dwordx4 {v(WB+8+4*(rb*3+th),4)}, v37, {s(sW2,4)}, s5 offen offset:{th*256}")
    if VPOS=='mid': ldv()
    nv = 3 if VPOS=='mid' else 0
    a("v_lshlrev_b32 v38, 1, v33")
    a(f"v_cmp_gt_u32 vcc, {N}, v35")
    a("v_lshlrev_b32 v40, 8, v35")
    a("v_lshl_add_u32 v40, v34, 4, v40")
    a(f"v_mov_b32 v41, {BIG}")
    a("v_cndmask_b32 v40, v41, v40, vcc")
    a("v_and_b32 v41, 0x33, v32")
    a("v_and_b32 v42, 4, v32")
    a("v_lshl_or_b32 v41, v42, 1, v41")
    a("v_and_b32 v42, 8, v32")
    a("v_lshrrev_b32 v42, 1, v42")
    a("v_or_b32 v41, v41, v42")
    a("v_mul_u32_u24 v41, 288, v41")
    a("v_lshl_add_u32 v41, v33, 4, v41")
    a(f"v_add_u32 v41, {W1L}, v41")
    a("v_mul_u32_u24 v42, 800, v32")
    a("v_lshrrev_b32 v43, 2, v33")
    a("v_lshl_add_u32 v42, v43, 6, v42")
    a("v_and_b32 v43, 3, v33")
    a("v_lshl_add_u32 v42, v43, 3, v42")
    a("v_add_u32 v43, 51200, v42")
    a("v_and_b32 v44, 3, v2")
    a("v_bfe_u32 v45, v2, 2, 2")
    a("v_and_b32 v46, 1, v34")
    a("v_lshrrev_b32 v47, 1, v34")
    a("v_lshl_add_u32 v46, v46, 2, v45")
    a("v_lshl_add_u32 v46, v47, 4, v46")
    a("v_mul_u32_u24 v46, 288, v46")
    a("v_lshl_add_u32 v46, v44, 3, v46")
    a("s_lshl_b32 s5, s7, 6")
    a(f"s_add_u32 s8, s5, {W1L}")
    a("v_add_u32 v46, s8, v46")
    a("v_lshl_add_u32 v47, v34, 2, v45")
    a("v_mul_u32_u24 v47, 800, v47")
    a("v_lshl_add_u32 v47, v44, 3, v47")
    a("v_add_u32 v47, s5, v47")
    a("v_add_u32 v48, 51200, v47")
    a("s_lshl_b32 s8, s6, 12")
    a(f"s_add_u32 s5, s8, {W1L}")
    a("v_lshlrev_b32 v49, 4, v2")
    a("v_add_u32 v49, s5, v49")
    a("s_lshl_b32 s5, s7, 10")
    a("v_add_u32 v50, s5, v49")
    a(f"s_add_u32 s8, s8, {HL}")
    a("v_lshlrev_b32 v51, 8, v33")
    a("v_add_u32 v51, s8, v51")
    a("v_xor_b32 v52, v34, v33")
    for kk in range(4):
        a(f"v_xor_b32 v{53+kk}, {4*kk}, v52")
        a(f"v_lshl_add_u32 v{53+kk}, v{53+kk}, 4, v51")
    a(f"s_waitcnt vmcnt({6+nv})")
    for rb in range(2):
        a(f"ds_write_b128 v41, {v(WB+4*rb,4)} offset:{rb*64*288}")
    a("s_waitcnt lgkmcnt(0)")
    a.stamp(73,70)
    a("s_barrier")
    AF=96
    D=64
    D1=52
    def rd1(t, buf):
        for kk in range(4):
            for z in range(2):
                a(f"ds_read_b64_tr_b16 {v(AF+16*buf+4*kk+2*z,2)}, v46 offset:{(32*kk+8*z)*288+t*32}")
    def rd2(i, buf):
        part,zz=i>>1,i&1
        for kk in range(4):
            for z in range(2):
                base = 47 if kk<2 else 48
                a(f"ds_read_b64_tr_b16 {v(AF+16*buf+4*kk+2*z,2)}, v{base} offset:{(32*(kk&1)+16*z)*800+part*256+zz*32}")
    for kk in range(4):
        a(f"ds_read_b128 {v(SF+4*kk,4)}, v{53+kk}")
    rd1(0,0)
    if VPOS=='late': ldv(); nv=3
    a("s_waitcnt lgkmcnt(7)")
    rd1(1,1)
    a.stamp(74,70)
    for t in range(2):
        a(f"s_waitcnt lgkmcnt({8 if t==0 else 0})")
        for kk in range(4):
            c = "0" if kk==0 else v(D1+4*t,4)
            a(f"v_mfma_f32_16x16x32_bf16 {v(D1+4*t,4)}, {v(AF+16*t+4*kk,4)}, {v(SF+4*kk,4)}, {c}")
    a("s_barrier")
    a("s_mov_b32 s5, 0xbfb8aa3b")
    a.nop(2)
    H=4
    TMP=60
    for p in range(4):
        x0,x1=D1+2*p,D1+2*p+1
        t0,t1=TMP+2*(p&1),TMP+2*(p&1)+1
        a(f"v_cvt_pk_bf16_f32 v{x1}, v{x0}, v{x1}")
        a(f"v_lshlrev_b32 v{x0}, 16, v{x1}")
        a(f"v_and_b32 v{x1}, 0xffff0000, v{x1}")
        a(f"v_mul_f32 v{t0}, s5, v{x0}")
        a(f"v_mul_f32 v{t1}, s5, v{x1}")
        a(f"v_exp_f32 v{t0}, v{t0}")
        a(f"v_exp_f32 v{t1}, v{t1}")
        a("s_nop 0")
        a(f"v_add_f32 v{t0}, 1.0, v{t0}")
        a(f"v_add_f32 v{t1}, 1.0, v{t1}")
        a(f"v_rcp_f32 v{t0}, v{t0}")
        a(f"v_rcp_f32 v{t1}, v{t1}")
        a("s_nop 0")
        a(f"v_mul_f32 v{x0}, v{x0}, v{t0}")
        a(f"v_mul_f32 v{x1}, v{x1}, v{t1}")
        a(f"v_cvt_pk_bf16_f32 v{AF+p}, v{x0}, v{x1}")
    a(f"ds_write_b128 v50, {v(AF,4)}")
    for rb in range(2):
        a(f"s_waitcnt vmcnt({3+nv-3*rb})")
        for th in range(3):
            r=WB+8+4*(rb*3+th)
            a(f"ds_write2_b64 v{42+rb}, {v(r,2)}, {v(r+2,2)} offset0:{32*th} offset1:{32*th+4}")
    a("s_waitcnt lgkmcnt(0)")
    a.stamp(75,70)
    a("s_barrier")
    a.stamp(76,70)
    for kk in range(4):
        a(f"ds_read_b128 {v(H+4*kk,4)}, v49 offset:{kk*1024}")
    rd2(0,0)
    buf=0
    OUT=88
    a(f"s_mov_b32 s34, {WS_TS}")
    a("s_lshl_b32 s5, s7, 6")
    a("s_add_u32 s34, s34, s5")
    a(f"s_mul_i32 s35, s7, {TSZ}")
    for i in range(6):
        if i+1<6: a("s_waitcnt lgkmcnt(7)"); rd2(i+1,buf^1); a("s_waitcnt lgkmcnt(8)")
        else: a("s_waitcnt lgkmcnt(0)")
        for kk in range(4):
            c = "0" if kk==0 else v(D+4*i,4)
            a(f"v_mfma_f32_16x16x32_bf16 {v(D+4*i,4)}, {v(AF+16*buf+4*kk,4)}, {v(H+4*kk,4)}, {c}")
        buf^=1
        if i==3:
            for pp in range(4):
                a(f"v_cvt_pk_bf16_f32 v{OUT+pp}, v{D+2*pp}, v{D+2*pp+1}")
            a(f"buffer_store_dwordx4 {v(OUT,4)}, v40, {s(sWS,4)}, s34 offen {STF}")
    a.stamp(77,70)
    a("s_waitcnt vmcnt(1)")
    a.stamp(78,70)
    for pp in range(4):
        o=OUT+4*((pp+1)&1)
        x0,x1=D+8+2*pp,D+8+2*pp+1
        a(f"v_cvt_pk_bf16_f32 v{x1}, v{x0}, v{x1}")
        a(f"v_lshlrev_b32 v{x0}, 16, v{x1}")
        a(f"v_and_b32 v{x1}, 0xffff0000, v{x1}")
        for j in range(3):
            vv=VV+4*j+pp
            t0,t1=52+2*j,53+2*j
            a(f"v_lshlrev_b32 v{t0}, 16, v{vv}")
            a(f"v_and_b32 v{t1}, 0xffff0000, v{vv}")
            a(f"v_mul_f32 v{t0}, v{t0}, v{x0}")
            a(f"v_mul_f32 v{t1}, v{t1}, v{x1}")
            a(f"v_cvt_pk_bf16_f32 v{o+j}, v{t0}, v{t1}")
        a(f"v_cvt_pk_bf16_f32 v{o+3}, v{D+16+2*pp}, v{D+16+2*pp+1}")
        if COMP:
            a(f"v_and_b32 v58, 0x8000, v{o+3}")
            a(f"v_bfe_u32 v59, v{o+3}, 16, 15")
            a(f"v_lshlrev_b32 v59, 15, v59")
            a(f"v_min_u32 v58, v58, v59")
            a(f"v_lshlrev_b32 v58, 1, v58")
            a(f"v_sub_u32 v{o+3}, v{o+3}, v58")
        a(f"buffer_store_dwordx4 {v(o,4)}, v40, {s(sWS,4)}, s35 offen offset:{64*pp} {STF}")
    a.stamp(79,70)
    fin(False)
```

```python
from asmlib import *
from consts import *
from k1 import srd, COMP, PM, publish
import os
EXP=os.environ.get('EXP','')
SLP=int(os.environ.get('SLP','16'))
DEVTO=bool(os.environ.get('DEVTO'))
GI=int(os.environ.get('GI','1'))

CNTL=0; CLAIML=784; POOLC=788; FLAGL=792; TTL=800
NVU=NB//2; NU=NVU+NQ
LAL=2368; NBK=285; POOL=NBK-NB; RECL=LAL+(NBK*68+15)//16*16; LUTL=163840-LUT_BYTES; K2_LDS=163840
assert TTL+8*(NU+24)<=LAL and RECL+NBK*272<=LUTL and RECL%16==0
NCH=10; WIN=16*NCH
CARRY_WG=392*512
F_VALID,F_S,F_EX,F_FIRST,F_LAST=0,1,2,3,4
SD="dst_sel:DWORD dst_unused:UNUSED_PAD"

def gen_k2(a):
    t0,t1,t2,t3=4,5,6,7
    sT,sSV,sOUT,sWS,sWR=8,12,16,20,24
    sSB,sVB=28,30
    sWV,sQ,sBIN,sN0,sWIN,sNEW,sFIRST,sFLAG,sMORE,sLO,sHI=range(32,43)
    cCnt,cNode,cFl=43,44,45
    xBlk,xCnt,xNode,xFl=46,47,48,49
    nBlk,nCnt,nNode,nFl=50,51,52,53
    sP2,sSLOW=54,55
    sPEND=56
    sWA,sWB,sNEED,sEND=76,77,78,79
    G=0; F=32; Y=56; DW=64; XA=80; XB=88; WV=96; WR=104; A=108; R=112; LWA=116; LWP=117; SVD=118; SVS=119
    PLA,PLAP,PSRC,C8,C8P,C16,VO1,VO2=range(120,128)
    SRCW=XA+3; CLM=XA+7; TA=XB+3; TA2=XB+7

    a.label("M_ENTRY")
    a.stamp(84,96)
    a("s_load_dwordx2 s[4:5], s[0:1], 0")
    a("s_load_dwordx4 s[44:47], s[0:1], 56")
    a("s_load_dwordx2 s[6:7], s[0:1], 80")
    a("s_load_dwordx2 s[48:49], s[0:1], 72")
    a(f"s_mov_b32 s{sWV}, s3")
    a("s_and_b32 s3, s2, 7")
    a(f"s_and_b32 s{sQ}, s3, 3")
    a("s_lshr_b32 s3, s3, 2")
    a("s_lshl_b32 s3, s3, 5")
    a(f"s_lshr_b32 s{sBIN}, s2, 3")
    a(f"s_add_u32 s{sBIN}, s{sBIN}, s3")
    a(f"s_mul_i32 s{sN0}, s{sBIN}, {NB}")
    a(f"s_mov_b32 s{sWIN}, 0")
    a(f"s_mov_b32 s{sNEW}, 1")
    a(f"s_mov_b32 s{sFIRST}, 1")
    a(f"s_mov_b32 s{sLO}, 0x05040100")
    a(f"s_mov_b32 s{sHI}, 0x07060302")
    a("s_waitcnt lgkmcnt(0)")
    srd(a,sWS,6,WS_CARRY+256*CARRY_WG)
    sDBG=80
    srd(a,sDBG,48,256)
    def poll(ctr, target):
        L=a.newlabel("M_POLL"); LE=a.newlabel("M_POLLE")
        a(f"s_cmp_lg_u32 s{sWV}, 0")
        a(f"s_cbranch_scc1 {LE}")
        a(f"v_mov_b32 v24, {ctr}")
        if DEVTO: a(f"s_mov_b32 s{t1}, 0")
        a("s_mov_b64 exec, 1")
        a.label(L)
        if PM=='flag': a(f"buffer_load_dword v25, v24, {s(sDBG,4)}, 0 offen offset:128 sc1")
        elif PM=='atom':
            a("v_mov_b32 v25, 0")
            a(f"buffer_atomic_add v25, v24, {s(sDBG,4)}, 0 offen sc0")
        else: a(f"buffer_load_dword v25, v24, {s(sDBG,4)}, 0 offen sc1")
        a("s_waitcnt vmcnt(0)")
        a(f"v_readfirstlane_b32 s{t0}, v25")
        if DEVTO:
            a(f"s_add_u32 s{t1}, s{t1}, 1")
            a(f"s_cmp_gt_u32 s{t1}, 20000")
            a(f"s_cselect_b32 s{t0}, {target}, s{t0}")
        LX=a.newlabel("M_POLLX")
        a(f"s_cmp_ge_u32 s{t0}, {target}")
        a(f"s_cbranch_scc1 {LX}")
        a(f"s_sleep {SLP}")
        a(f"s_branch {L}")
        a.label(LX)
        a("s_mov_b64 exec, -1")
        a.label(LE)
    srd(a,sSV,4,N*1024); srd(a,sOUT,46,N*1024); srd(a,sWR,44,16*768)
    a(f"s_mul_i32 s3, s{sQ}, {TSZ}")
    a(f"s_add_u32 s{sVB}, s6, s3")
    a(f"s_addc_u32 s{sVB+1}, s7, 0")
    a(f"s_and_b32 s{sVB+1}, s{sVB+1}, 0xffff")
    a(f"s_add_u32 s{sSB}, s6, {WS_TS}")
    a(f"s_addc_u32 s{sSB+1}, s7, 0")
    a(f"s_and_b32 s{sSB+1}, s{sSB+1}, 0xffff")
    a(f"s_mov_b32 s{sT+2}, {TSZ}")
    a(f"s_mov_b32 s{sT+3}, 0x00020000")
    a.label("M_ROUND")
    a(f"s_mov_b32 s{sT}, s{sVB}")
    a(f"s_mov_b32 s{sT+1}, s{sVB+1}")
    TID=95; LANE=94; N16=93; GAM=92; T16=91; PAIR=90; GG=89
    a(f"v_mbcnt_lo_u32_b32 v{LANE}, -1, 0")
    a(f"v_mbcnt_hi_u32_b32 v{LANE}, -1, v{LANE}")
    a(f"s_lshl_b32 s3, s{sWV}, 6")
    a(f"v_add_u32 v{TID}, s3, v{LANE}")
    a(f"v_lshrrev_b32 v{GAM}, 4, v{TID}")
    a(f"v_and_b32 v{N16}, 15, v{LANE}")
    a(f"v_lshlrev_b32 v{T16}, 4, v{TID}")
    WRAW=108
    a(f"v_lshrrev_b32 v{GG}, 4, v{LANE}")
    a(f"v_mul_u32_u24 v5, {4*768}, v{GG}")
    a(f"v_and_b32 v6, 3, v{N16}")
    a(f"v_lshrrev_b32 v7, 2, v{N16}")
    a(f"v_lshl_add_u32 v{PAIR}, v6, 2, v7")
    a(f"v_lshl_add_u32 v5, v{PAIR}, 2, v5")
    a(f"s_lshl_b32 s3, s{sQ}, 6")
    for r in range(4):
        a(f"buffer_load_dword v{WRAW+r}, v5, {s(sWR,4)}, s3 offen offset:{256+768*r}")
        a(f"buffer_load_dword v{WRAW+4+r}, v5, {s(sWR,4)}, s3 offen offset:{512+768*r}")
    a("v_mov_b32 v8, 0"); a("v_mov_b32 v9, 0xffff0000"); a("v_mov_b32 v10, 0"); a("v_mov_b32 v11, 0xffff0000")
    a("v_mov_b32 v12, 0"); a("v_mov_b32 v13, 0"); a("v_mov_b32 v14, 0"); a("v_mov_b32 v15, 0")
    a(f"ds_write_b128 v{T16}, v[12:15]")
    a(f"v_add_u32 v16, {RECL}, v{T16}")
    for it in range(4):
        a(f"ds_write_b128 v16, v[8:11] offset:{it*16384}")
    a(f"v_add_u32 v17, {RECL+65536}, v{T16}")
    a(f"v_cmp_gt_u32 vcc, {(LUTL-RECL-65536)//16}, v{TID}")
    a("s_mov_b64 exec, vcc")
    a("ds_write_b128 v17, v[8:11]")
    a(f"v_cmp_gt_u32 vcc, {(RECL-16384)//16}, v{TID}")
    a("s_mov_b64 exec, vcc")
    a(f"ds_write_b128 v{T16}, v[12:15] offset:16384")
    a("s_mov_b64 exec, -1")
    a(f"v_bfe_u32 v22, v{LANE}, 2, 2")
    a(f"v_lshlrev_b32 v{PLA}, 4, v22")
    a(f"v_lshl_add_u32 v{PLA}, v{GG}, 2, v{PLA}")
    a(f"v_and_b32 v23, 3, v{LANE}")
    a(f"v_lshlrev_b32 v{C8}, 3, v23")
    a(f"v_add_u32 v{C8}, {LUTL}, v{C8}")
    a(f"v_lshlrev_b32 v{PLAP}, 2, v{PAIR}")
    a(f"v_lshlrev_b32 v{PSRC}, 6, v23")
    a(f"v_lshl_add_u32 v{PSRC}, v{GG}, 4, v{PSRC}")
    a(f"v_and_b32 v23, 4, v{LANE}")
    a(f"v_lshl_add_u32 v{PSRC}, v23, 1, v{PSRC}")
    a(f"v_lshlrev_b32 v{C8P}, 3, v{GG}")
    a(f"v_add_u32 v{C8P}, {LUTL}, v{C8P}")
    a(f"v_lshlrev_b32 v{C16}, 4, v{N16}")
    a(f"v_lshrrev_b32 v22, 1, v{GG}")
    a(f"v_and_b32 v23, 1, v{GG}")
    a(f"v_lshlrev_b32 v{VO1}, 10, v22")
    a(f"v_lshl_add_u32 v{VO1}, v{N16 if 'lin' in EXP else PAIR}, 2, v{VO1}")
    a(f"s_lshl_b32 s3, s{sQ}, 6")
    a(f"s_add_u32 s3, s3, 256")
    a(f"v_add_u32 v{VO1}, s3, v{VO1}")
    a(f"v_lshl_add_u32 v{VO2}, v23, 1, v{VO1}")
    a(f"v_add_u32 v{VO2}, 512, v{VO2}")
    a(f"v_lshl_add_u32 v{VO1}, v23, 8, v{VO1}")
    a(f"v_mov_b32 v{SVS}, 0")
    a("v_mov_b32 v16, 33")
    poll(CTR_A,PW)
    a("s_waitcnt vmcnt(0) lgkmcnt(0)")
    a("s_barrier")
    a.stamp(86,96)
    OFFV=0
    a(f"v_lshlrev_b32 v1, 2, v{GAM}")
    a(f"s_lshl_b32 s3, s{sBIN}, 8")
    a(f"s_add_u32 s3, s3, {WS_OFF}")
    a(f"buffer_load_dword v{OFFV}, v1, {s(sWS,4)}, s3 offen")
    LNP=a.newlabel("M_NP")
    a(f"s_cmp_lt_u32 s2, {PW}")
    a(f"s_cbranch_scc1 {LNP}")
    a(f"s_cmp_eq_u32 s{sFIRST}, 0")
    a(f"s_cbranch_scc1 {LNP}")
    publish(a,sWV,sDBG,CTR_T,NTW,24)
    a.label(LNP)
    for r in range(4):
        a(f"v_lshlrev_b32 v{WV+r}, 16, v{WRAW+r}")
        a(f"v_and_b32 v{WV+4+r}, 0xffff0000, v{WRAW+r}")
    for r in range(4):
        a(f"v_lshlrev_b32 v{24+r}, 16, v{WRAW+4+r}")
        a(f"v_and_b32 v{28+r}, 0xffff0000, v{WRAW+4+r}")
    for r in range(8): a(f"v_mul_f32 v{24+r}, 0x3e800000, v{24+r}")
    for k in range(4): a(f"v_cvt_pk_bf16_f32 v{WR+k}, v{24+2*k}, v{25+2*k}")
    SA=20; REM=21; RC=32; A4=72
    rc=lambda i: RC+4*i
    pm=lambda i: f"s[{sPEND+2*i}:{sPEND+2*i+1}]"
    a(f"v_add_u32 v17, s{sWIN}, v{N16}")
    a(f"s_mov_b32 s3, {RECW}")
    a(f"v_cmp_gt_u32 vcc, {PW}, v{GAM}")
    a("s_waitcnt vmcnt(0)")
    a.stamp(85,96)
    a(f"v_lshrrev_b32 v{REM}, 16, v{OFFV}")
    a(f"v_and_b32 v{SA}, 0xffff, v{OFFV}")
    a(f"v_add_u32 v{SA}, v{SA}, v17")
    a(f"v_cndmask_b32 v{REM}, 0, v{REM}, vcc")
    a(f"v_mul_u32_u24 v{SA}, 12, v{SA}")
    a(f"v_mad_u32_u24 v{SA}, v{GAM}, s3, v{SA}")
    a(f"v_sub_u32 v{REM}, v{REM}, v17")
    a(f"s_cmp_eq_u32 s{sNEW}, 0")
    a("s_cbranch_scc1 M_OLDWIN")
    for c in range(NCH):
        if 16*c<=64: a(f"v_cmp_lt_i32 {pm(c)}, {16*c}, v{REM}")
        else:
            a(f"v_cmp_lt_i32 vcc, {16*c}, v{REM}")
            a(f"s_mov_b64 {pm(c)}, vcc")
    a(f"v_cmp_lt_i32 vcc, {WIN}, v{REM}")
    a("s_cmp_lg_u64 vcc, 0")
    a(f"s_cselect_b32 s{sMORE}, 2, 0")
    a.label("M_OLDWIN")
    a(f"s_mov_b32 s3, {WS_REC}")
    def each_slot(body, tag):
        for i in range(NCH):
            L=a.newlabel(tag)
            a(f"s_mov_b64 exec, {pm(i)}")
            a(f"s_cbranch_execz {L}")
            body(i)
            a.label(L)
        a("s_mov_b64 exec, -1")
    each_slot(lambda i: a(f"buffer_load_dwordx3 {v(rc(i),3)}, v{SA}, {s(sWS,4)}, s3 offen offset:{192*i}"), "M_LD")
    a(f"s_lshl_b32 s{t0}, s{sWV}, 10")
    a(f"s_add_u32 s{t0}, s{t0}, {LUTL}")
    for it in range(4):
        a(f"s_mov_b32 s3, {WS_LUT+it*16384}")
        if it==3:
            a(f"s_cmp_eq_u32 s{sWV}, 15")
            a(f"s_cselect_b32 s{t1}, 1024, 0")
            a(f"s_sub_u32 s{t0}, s{t0}, s{t1}")
            a(f"s_sub_u32 s3, s3, s{t1}")
        a(f"s_add_u32 m0, s{t0}, {it*16384}")
        a("s_nop 0")
        a(f"buffer_load_dwordx4 v{T16}, {s(sWS,4)}, s3 offen lds")
    nyoung=4
    a(f"s_waitcnt vmcnt({nyoung})")
    a.stamp(87,96)
    def rank(i):
        a(f"v_lshrrev_b32 v{A4+i}, 16, v{rc(i)+2}")
        a(f"ds_add_rtn_u32 v{rc(i)+3}, v{A4+i}, v16 offset:{CNTL}")
    each_slot(rank,"M_RK")
    nt=0
    if 'touch' in EXP:
        a(f"s_lshr_b32 s3, s2, 3")
        a(f"s_mul_i32 s3, s3, {782*128}")
        a(f"v_lshlrev_b32 v1, 7, v{TID}")
        a(f"v_add_u32 v1, s3, v1")
        a(f"v_cmp_gt_u32 vcc, 782, v{TID}")
        a(f"v_mov_b32 v2, {BIG}")
        a(f"v_lshrrev_b32 v3, 2, v{TID}")
        a(f"v_cndmask_b32 v1, v2, v1, vcc")
        if "touchT" in EXP: a(f"buffer_load_dword v82, v1, {s(sT,4)}, 0 offen"); nt+=1
        if 'touchS' in EXP:
            a(f"v_and_b32 v4, 3, v{TID}")
            a(f"v_lshlrev_b32 v5, 10, v3")
            a(f"v_lshl_add_u32 v5, v4, 8, v5")
            a(f"s_lshr_b32 s3, s{sQ}, 1")
            a(f"s_lshl_b32 s3, s3, 7")
            a(f"s_add_u32 s3, s3, 256")
            a(f"v_add_u32 v5, s3, v5")
            a(f"v_lshrrev_b32 v6, 1, v3")
            a(f"s_mul_i32 s3, s{sQ}, {NQ}")
            a(f"v_add_u32 v6, s3, v6")
            a(f"v_lshlrev_b32 v6, 10, v6")
            a(f"v_and_b32 v7, 1, v3")
            a(f"v_lshl_add_u32 v6, v7, 7, v6")
            a(f"v_cmp_gt_u32 vcc, {2*NQ}, v3")
            a(f"v_cmp_eq_u32 s[0:1], 3, v4")
            a(f"s_lshl_b32 s3, s{sN0}, 10")
            a(f"v_cndmask_b32 v6, v2, v6, vcc")
            a(f"v_cmp_gt_u32 vcc, {NB}, v3")
            a(f"v_cndmask_b32 v5, v5, v6, s[0:1]")
            a(f"v_add_u32 v5, s3, v5")
            a(f"v_cndmask_b32 v5, v2, v5, vcc")
            a(f"buffer_load_dword v84, v5, {s(sSV,4)}, 0 offen"); nt+=1

    a("s_waitcnt lgkmcnt(0)")
    def place(i):
        a(f"v_cmp_gt_u32 vcc, {32*33}, v{rc(i)+3}")
        a(f"v_bfe_u32 v18, v{rc(i)+3}, 4, 5")
        a(f"v_mul_u32_u24 v19, 17, v{A4+i}")
        a(f"s_andn2_b64 {pm(i)}, exec, vcc")
        a(f"v_lshl_add_u32 v19, v18, 1, v19")
        a(f"v_lshlrev_b32 v18, 2, v19")
        a(f"s_mov_b64 exec, vcc")
        a(f"ds_write_b64 v18, {v(rc(i),2)} offset:{RECL}")
        a(f"ds_write_b16 v19, v{rc(i)+2} offset:{LAL}")
    each_slot(place,"M_PL")
    a("s_waitcnt lgkmcnt(0)")
    a("s_barrier")
    a.stamp(88,96)
    a(f"s_cmp_ge_u32 s{sWV}, 4")
    a("s_cbranch_scc1 M_NOALLOC")
    a(f"v_lshlrev_b32 v18, 2, v{TID}")
    a(f"v_cmp_gt_u32 vcc, {NB}, v{TID}")
    a("s_mov_b64 exec, vcc")
    a(f"ds_read_b32 v19, v18 offset:{CNTL}")
    a(f"v_mov_b32 v20, {POOL}")
    a(f"v_mov_b32 v21, {POOLC}")
    a("v_mov_b32 v22, 1")
    a(f"s_sub_u32 s3, {N}, s{sN0}")
    a(f"v_cmp_gt_u32 vcc, s3, v{TID}")
    a(f"v_mov_b32 v23, {4<<8}")
    a(f"v_mov_b32 v24, {5<<8}")
    a(f"v_cndmask_b32 v23, v23, v24, vcc")
    a(f"v_or_b32 v23, v23, v{TID}")
    a("s_waitcnt lgkmcnt(0)")
    a(f"v_min_u32 v19, {64*33}, v19")
    a("v_mul_u32_u24 v19, 1986, v19")
    a("v_lshrrev_b32 v19, 16, v19")
    a("v_cmp_lt_u32 vcc, 32, v19")
    a("s_and_saveexec_b64 s[0:1], vcc")
    a("ds_add_rtn_u32 v20, v21, v22")
    a("s_mov_b64 exec, s[0:1]")
    a(f"s_mul_i32 s3, s{sQ}, {NQ}")
    a(f"v_subrev_u32 v24, s3, v{TID}")
    a("s_waitcnt lgkmcnt(0)")
    a(f"v_cmp_gt_u32 vcc, {POOL}, v20")
    a(f"v_add_u32 v20, {NB}, v20")
    a("v_min_u32 v21, 64, v19")
    a("v_lshl_or_b32 v21, v20, 7, v21")
    a("v_min_u32 v19, 32, v19")
    a("v_cndmask_b32 v19, v19, v21, vcc")
    a("v_lshl_or_b32 v19, v23, 16, v19")
    a(f"ds_write_b32 v18, v19 offset:{TTL}")
    a(f"v_cmp_gt_u32 vcc, {NQ}, v24")
    a(f"v_or_b32 v19, {1<<25}, v19")
    a("v_lshlrev_b32 v24, 3, v24")
    a("s_and_b64 exec, exec, vcc")
    a(f"ds_write_b32 v24, v19 offset:{TTL+8*NVU}")
    a("s_mov_b64 exec, -1")
    a("s_waitcnt lgkmcnt(0)")
    a.label("M_NOALLOC")
    for r in range(0,16): a(f"v_mov_b32 v{r}, 0")
    a("s_barrier")
    a(f"s_lshl_b32 s3, s{sWV}, 3")
    a(f"v_mov_b32 v20, s3")
    a(f"ds_read_b64 v[22:23], v20 offset:{TTL}")
    a(f"s_movk_i32 s{t2}, 68")
    each_slot(lambda i: a(f"ds_read_b32 v{A4+i}, v{A4+i} offset:{TTL}"),"M_P1")
    a("s_waitcnt lgkmcnt(0)")
    def place2(i):
        a(f"v_and_b32 v19, 0x7f, v{A4+i}")
        a("v_mul_u32_u24 v19, 33, v19")
        a(f"v_cmp_lt_u32 vcc, v{rc(i)+3}, v19")
        a(f"v_subrev_u32 v18, {32*33}, v{rc(i)+3}")
        a(f"v_bfe_u32 v18, v18, 4, 5")
        a(f"v_bfe_u32 v19, v{A4+i}, 7, 9")
        a(f"s_andn2_b64 {pm(i)}, exec, vcc")
        a(f"v_mul_u32_u24 v19, s{t2}, v19")
        a(f"v_lshl_add_u32 v19, v18, 1, v19")
        a(f"v_lshlrev_b32 v18, 2, v19")
        a("s_mov_b64 exec, vcc")
        a(f"ds_write_b64 v18, {v(rc(i),2)} offset:{RECL}")
        a(f"ds_write_b16 v19, v{rc(i)+2} offset:{LAL}")
    each_slot(place2,"M_P2")
    a(f"v_readfirstlane_b32 s{sWA}, v22")
    a(f"v_readfirstlane_b32 s{sWB}, v23")
    a(f"s_or_b64 s[0:1], {pm(0)}, {pm(1)}")
    for i in range(2,NCH): a(f"s_or_b64 s[0:1], s[0:1], {pm(i)}")
    a("s_cselect_b32 s3, 1, 0")
    a(f"s_or_b32 s3, s3, s{sMORE}")
    a(f"v_mov_b32 v19, {FLAGL}")
    a("s_cbranch_scc0 M_NOFLAG")
    a("v_mov_b32 v18, s3")
    a("ds_or_b32 v19, v18")
    a.label("M_NOFLAG")
    a.stamp(92,96)
    poll(CTR_T,NTW)
    a(f"s_waitcnt vmcnt({nt}) lgkmcnt(0)")
    a("s_barrier")
    a.stamp(89,96)
    a(f"ds_read_b32 v{LWA}, v19")
    for r in list(range(16,64))+list(range(A,A+8)): a(f"v_mov_b32 v{r}, 0")
    a(f"s_mov_b32 s{sP2}, 0")
    a(f"s_mov_b32 s{sNEED}, 0")
    a(f"s_mov_b32 s{sEND}, 0")
    a("s_waitcnt lgkmcnt(0)")
    a(f"v_readfirstlane_b32 s{sFLAG}, v{LWA}")
    a(f"s_xor_b32 s{sSLOW}, s{sFIRST}, 1")
    a(f"s_or_b32 s{sSLOW}, s{sSLOW}, s{sFLAG}")

    def next_desc():
        L2=a.newlabel("M_ND2"); LE=a.newlabel("M_NDE"); LC=a.newlabel("M_NDC")
        a(f"s_cmp_lg_u32 s{sP2}, 0")
        a(f"s_cbranch_scc1 {L2}")
        a(f"s_bfe_u32 s{nNode}, s{sWA}, 0x80010")
        a(f"s_mov_b32 s{nBlk}, s{nNode}")
        a(f"s_and_b32 s{nCnt}, s{sWA}, 0x7f")
        a(f"s_lshr_b32 s{nFl}, s{sWA}, 24")
        a(f"s_cmp_gt_u32 s{nCnt}, 32")
        a(f"s_cselect_b32 s{sP2}, s{sWA}, 0")
        a(f"s_cselect_b32 s{t0}, {1<<F_FIRST}, {(1<<F_FIRST)|(1<<F_LAST)}")
        a(f"s_or_b32 s{nFl}, s{nFl}, s{t0}")
        a(f"s_min_u32 s{nCnt}, s{nCnt}, 32")
        a(f"s_mov_b32 s{sWA}, s{sWB}")
        a(f"s_mov_b32 s{sWB}, 0")
        a(f"s_or_b32 s{t0}, s{sWA}, s{sEND}")
        a(f"s_cbranch_scc1 {LE}")
        a(f"s_mov_b32 s{sNEED}, 1")
        a(f"v_mov_b32 v{TA}, {CLAIML}")
        a(f"v_mov_b32 v{TA2}, 8")
        a("s_mov_b64 exec, 1")
        a(f"ds_add_rtn_u32 v{CLM}, v{TA}, v{TA2}")
        a("s_mov_b64 exec, -1")
        a(f"s_branch {LE}")
        a.label(L2)
        a(f"s_bfe_u32 s{nBlk}, s{sP2}, 0x90007")
        a(f"s_and_b32 s{nCnt}, s{sP2}, 0x7f")
        a(f"s_sub_u32 s{nCnt}, s{nCnt}, 32")
        a(f"s_lshr_b32 s{nFl}, s{sP2}, 24")
        a(f"s_or_b32 s{nFl}, s{nFl}, {1<<F_LAST}")
        a(f"s_mov_b32 s{sP2}, 0")
        a.label(LE)
    def claim_top():
        L=a.newlabel("M_CT")
        a(f"s_cmp_eq_u32 s{sNEED}, 0")
        a(f"s_cbranch_scc1 {L}")
        a("s_waitcnt lgkmcnt(0)")
        a("s_mov_b64 exec, 1")
        a(f"ds_read_b32 v{TA}, v{CLM} offset:{TTL+128}")
        a(f"ds_read_b32 v{TA2}, v{CLM} offset:{TTL+132}")
        a("s_mov_b64 exec, -1")
        a.label(L)
    def claim_mid():
        L=a.newlabel("M_CM")
        a(f"s_cmp_eq_u32 s{sNEED}, 0")
        a(f"s_cbranch_scc1 {L}")
        a(f"v_readfirstlane_b32 s{sWA}, v{TA}")
        a(f"v_readfirstlane_b32 s{sWB}, v{TA2}")
        a(f"s_mov_b32 s{sNEED}, 0")
        a(f"s_cmp_eq_u32 s{sWA}, 0")
        a(f"s_cselect_b32 s{sEND}, 1, 0")
        a.label(L)
    def raw_reads(full):
        a(f"s_mul_i32 s{t0}, s{nBlk}, 68")
        a(f"s_lshl_b32 s{t1}, s{t0}, 2")
        a(f"v_add_u32 v{TA}, s{t0}, v{PLA}")
        a(f"ds_read_b32 v{LWA}, v{TA} offset:{LAL}")
        a(f"v_add_u32 v{TA2}, s{t1}, v{PSRC}")
        a(f"ds_read_u16 v{SRCW}, v{TA2} offset:{RECL+6}")
        if full:
            a(f"v_add_u32 v{TA}, s{t0}, v{PLAP}")
            a(f"ds_read_b32 v{LWP}, v{TA} offset:{LAL}")
    def rotate():
        a(f"s_mov_b32 s{cCnt}, s{xCnt}"); a(f"s_mov_b64 s[{cNode}:{cFl}], s[{xNode}:{xFl}]")
        a(f"s_mov_b64 s[{xBlk}:{xCnt}], s[{nBlk}:{nCnt}]"); a(f"s_mov_b64 s[{xNode}:{xFl}], s[{nNode}:{nFl}]")
    def gathers():
        LE=a.newlabel("M_GE"); LS=a.newlabel("M_GS"); LB=a.newlabel("M_GB")
        def one(i):
            ta = TA if i%2==0 else TA2
            a(f"v_add_u32_dpp v{ta}, v{SRCW}, v{C16} row_newbcast:{i} row_mask:0xf bank_mask:0xf")
            if 'nog' not in EXP: a(f"buffer_load_dwordx4 {v(G+4*i,4)}, v{ta}, {s(sT,4)}, 0 offen")
        a(f"s_cmp_le_u32 s{xCnt}, 12")
        a(f"s_cbranch_scc1 {LS}")
        for i in range(4): one(i)
        for i in range(4,8):
            a(f"s_cmp_le_u32 s{xCnt}, {4*i}")
            a(f"s_cbranch_scc1 {LE}")
            one(i)
        a.label(LE)
        def cold():
            a.label(LS)
            for i in range(3):
                a(f"s_cmp_le_u32 s{xCnt}, {4*i}")
                a(f"s_cbranch_scc1 {LE}")
                one(i)
            a(f"s_branch {LE}")
        return cold
    def gat(i):
        L=a.newlabel("M_G1")
        ta = TA if i%2==0 else TA2
        a(f"s_cmp_le_u32 s{xCnt}, {4*i}")
        a(f"s_cbranch_scc1 {L}")
        a(f"v_add_u32_dpp v{ta}, v{SRCW}, v{C16} row_newbcast:{i} row_mask:0xf bank_mask:0xf")
        if 'nog' not in EXP: a(f"buffer_load_dwordx4 {v(G+4*i,4)}, v{ta}, {s(sT,4)}, 0 offen")
        a.label(L)
    def node_off(dst, node, sub=0):
        a(f"s_add_u32 s{dst}, s{sN0}, s{node}")
        if sub: a(f"s_sub_u32 s{dst}, s{dst}, {sub}")
        a(f"s_min_u32 s{dst}, s{dst}, {N-2}")
        a(f"s_lshl_b32 s{dst}, s{dst}, 10")
    def sv_loadV(node):
        node_off(t2,node)
        a(f"buffer_load_dword v{SVD}, v{VO1}, {s(sSV,4)}, s{t2} offen")
        a(f"buffer_load_short_d16_hi v{SVS}, v{VO2}, {s(sSV,4)}, s{t2} offen")
    def carry(Zs, kind, sub, Lback, tail):
        LC=a.newlabel("M_NOC")
        a(f"v_mbcnt_lo_u32_b32 v{TA}, -1, 0")
        a(f"v_mbcnt_hi_u32_b32 v{TA}, -1, v{TA}")
        a(f"v_lshlrev_b32 v{TA}, 2, v{TA}")
        a(f"s_mul_i32 s{t2}, s2, {CARRY_WG}")
        a(f"s_lshl_b32 s{t3}, s{cNode}, 9")
        a(f"s_add_u32 s{t2}, s{t2}, s{t3}")
        a(f"s_add_u32 s{t2}, s{t2}, {WS_CARRY+kind*NB*512-sub*512}")
        a(f"s_cmp_lg_u32 s{sFIRST}, 0")
        a(f"s_cbranch_scc1 {LC}")
        for i,z in enumerate(Zs):
            a(f"buffer_load_dword v{TA2}, v{TA}, {s(sWS,4)}, s{t2} offen offset:{256*i} sc1")
            a("s_waitcnt vmcnt(0)")
            a(f"v_add_f32 v{z}, v{z}, v{TA2}")
        a.label(LC)
        a(f"s_cmp_eq_u32 s{sFLAG}, 0")
        a(f"s_cbranch_scc1 {Lback}")
        for i,z in enumerate(Zs):
            a(f"buffer_store_dword v{z}, v{TA}, {s(sWS,4)}, s{t2} offen offset:{256*i} sc1")
        tail()

    PROF = a.stamps and 'prof' in EXP
    def tick(acc):
        if not PROF: return
        a("s_memtime s[96:97]"); a("s_waitcnt lgkmcnt(0)")
        a("s_sub_u32 s97, s96, s56"); a("s_mov_b32 s56, s96")
        a(f"s_add_u32 s{acc}, s{acc}, s97")
    if PROF:
        for r in (57,58,59,99,100,101): a(f"s_mov_b32 s{r}, 0")
        a("s_memtime s[96:97]"); a("s_waitcnt lgkmcnt(0)"); a("s_mov_b32 s56, s96")
    next_desc()
    raw_reads(True)
    sv_loadV(nNode)
    a(f"s_mov_b32 s{xCnt}, 0"); a(f"s_mov_b32 s{xNode}, 0"); a(f"s_mov_b32 s{xFl}, {(1<<F_FIRST)|(1<<F_LAST)}")
    rotate()
    a.stamp(90,96)
    if a.stamps:
        a("s_memtime s[96:97]"); a("s_waitcnt lgkmcnt(0)"); a("s_mov_b32 s95, s96")
    a("s_branch VB_MID")
    colds=[]
    def vexit(L):
        a(f"s_and_b32 s{t0}, s{cFl}, {(1<<F_S)|(1<<F_EX)}")
        a(f"s_cmp_eq_u32 s{t0}, {1<<F_EX}")
        a(f"s_cbranch_scc1 {L}")
        a("s_branch S_START")
    for cp,X,PT in (("A",XA,(XB+3,XB+7)),("B",XB,(XA+3,XA+7))):
        if cp=="A":
            a.label("VA_TOP0")
            a("s_waitcnt vmcnt(0)")
            a.label("VA_TOP")
            claim_top()
            tick(59)
            a("s_waitcnt vmcnt(4) lgkmcnt(0)")
            tick(57)
        else:
            a.label("VB_TOP0")
            claim_top()
            tick(59)
            a("s_waitcnt vmcnt(0)")
            tick(58)
            a.label("VB_MID")
            a("s_waitcnt lgkmcnt(0)")
        a(f"v_lshlrev_b32 v{SRCW}, 8, v{SRCW}")
        claim_mid()
        if cp=="B":
            a(f"s_bitcmp1_b32 s{xFl}, {F_S}")
            a(f"s_cselect_b32 s{sT}, s{sSB}, s{sT}")
            a(f"s_cselect_b32 s{sT+1}, s{sSB+1}, s{sT+1}")
        for p in range(4):
            LP=a.newlabel("V_NP")
            if p>0:
                a(f"s_cmp_le_u32 s{cCnt}, {8*p}")
                a(f"s_cbranch_scc1 {LP}")
            Ga,Gb=G+8*p,G+8*p+4
            h=p>>1; r=(2*p)&3
            d0=DW+(2*h)*4+r; d1=DW+(2*h+1)*4+r
            pr=[]
            for j in range(3):
                pr.append(f"v_perm_b32 v{F+(2*j)*4+p}, v{Gb+j}, v{Ga+j}, s{sLO}")
                pr.append(f"v_perm_b32 v{F+(2*j+1)*4+p}, v{Gb+j}, v{Ga+j}, s{sHI}")
            a(f"v_mul_f32 v{d1}, v{d1}, v{Ga+3}"); a(pr[0])
            a(f"v_mul_f32 v{d1+1}, v{d1+1}, v{Gb+3}"); a(pr[1])
            a(f"v_lshlrev_b32 v{Ga+3}, 16, v{Ga+3}")
            a(f"v_lshlrev_b32 v{Gb+3}, 16, v{Gb+3}")
            a(pr[2])
            if p>0 and GI==2: gat(2*p-1)
            a(f"v_mul_f32 v{d0}, v{d0}, v{Ga+3}"); a(pr[3])
            a(f"v_mul_f32 v{d0+1}, v{d0+1}, v{Gb+3}"); a(pr[4])
            a(f"v_cvt_pk_bf16_f32 v{Y+4+p}, v{d1}, v{d1+1}")
            a(pr[5])
            a(f"v_cvt_pk_bf16_f32 v{Y+p}, v{d0}, v{d0+1}")
            if GI==2 and p>0:
                LQ=a.newlabel("V_NQ")
                a(f"s_branch {LQ}")
                a.label(LP)
                gat(2*p-1)
                a.label(LQ)
            else: a.label(LP)
            gat(2*p)
            if GI==1 or p==3: gat(2*p+1)
        tick(99)
        a(f"s_bitcmp1_b32 s{cFl}, {F_FIRST}")
        a(f"s_cbranch_scc0 V{cp}_ACC")
        for t in range(2): a(f"v_mfma_f32_16x16x32_bf16 {v(X+4*t,4)}, {v(R,4)}, {v(Y+4*t,4)}, 0")
        a.label(f"V{cp}_ACCB")
        def acc(cp=cp,X=X):
            a.label(f"V{cp}_ACC")
            for t in range(2): a(f"v_mfma_f32_16x16x32_bf16 {v(X+4*t,4)}, {v(R,4)}, {v(Y+4*t,4)}, {v(X+4*t,4)}")
            a(f"s_branch V{cp}_ACCB")
        colds.append(acc)
        def MD(k): a(f"v_mfma_f32_16x16x32_bf16 {v(DW+4*(k&3),4)}, {v(A,4)}, {v(F+4*k,4)}, 0")
        def post(k):
            j,t=k>>1,k&1
            for r in range(4): a(f"v_fmac_f32 v{X+4*t+j}, v{DW+4*(k&3)+r}, v{WV+4*t+r}")
        MD(0)
        a(f"v_add_u32_sdwa v{PT[0]}, v{LWP}, v{C8P} {SD} src0_sel:WORD_0 src1_sel:DWORD")
        MD(1)
        a(f"v_add_u32_sdwa v{PT[1]}, v{LWP}, v{C8P} {SD} src0_sel:WORD_1 src1_sel:DWORD")
        MD(2)
        a(f"ds_read_b64 {v(R,2)}, v{PT[0]}")
        a(f"ds_read_b64 {v(R+2,2)}, v{PT[1]}")
        MD(3)
        a(f"v_add_u32_sdwa v{PT[0]}, v{LWA}, v{C8} {SD} src0_sel:WORD_0 src1_sel:DWORD")
        post(0); MD(4)
        a(f"v_add_u32_sdwa v{PT[1]}, v{LWA}, v{C8} {SD} src0_sel:WORD_1 src1_sel:DWORD")
        post(1); MD(5)
        a(f"ds_read_b64_tr_b16 {v(A,2)}, v{PT[0]}")
        a(f"ds_read_b64_tr_b16 {v(A+2,2)}, v{PT[1]}")
        a(f"s_mul_i32 s{t1}, s{xBlk}, 272")
        post(2); post(3)
        a("s_waitcnt lgkmcnt(2)")
        def MW(h,t): a(f"v_mfma_f32_16x16x16_bf16 {v(DW+(2*h+t)*4,4)}, {v(R+2*h,2)}, {v(WR+2*t,2)}, 0")
        MW(1,0); MW(1,1)
        a(f"v_lshl_add_u32 v{PT[0]}, v{PLA}, 2, s{t1}")
        post(4); MW(0,0); post(5); MW(0,1)
        a(f"ds_read_b64_tr_b16 {v(R,2)}, v{PT[0]} offset:{RECL}")
        a(f"ds_read_b64_tr_b16 {v(R+2,2)}, v{PT[0]} offset:{RECL+8}")
        tick(100)
        next_desc()
        raw_reads(True)
        if PROF: a("s_add_u32 s101, s101, 1")
        a(f"s_bitcmp1_b32 s{cFl}, {F_LAST}")
        if cp=="A":
            rotate()
            a("s_cbranch_scc0 VA_TOP0")
        else:
            a("s_cbranch_scc1 V_EPI")
            rotate()
            a("s_branch VB_TOP0")
    a.label("V_EPI")
    a(f"s_bitcmp1_b32 s{cFl}, {F_VALID}")
    a("s_cbranch_scc0 V_SKIP")
    for t in range(2):
        for j in range(3): a(f"v_permlane32_swap_b32 v{XA+4*t+j}, v{XB+4*t+j}")
    for j in range(3):
        for t in range(2): a(f"v_add_f32 v{XA+4*t+j}, v{XA+4*t+j}, v{XB+4*t+j}")
    a(f"v_permlane16_swap_b32 v{XA}, v{XA+1}")
    a(f"v_permlane16_swap_b32 v{XA+4}, v{XA+5}")
    a(f"v_permlane16_swap_b32 v{XA+2}, v{XA+6}")
    Z0,Z1,Z2=XA,XA+4,XA+2
    a(f"v_add_f32 v{Z0}, v{XA}, v{XA+1}")
    a(f"v_add_f32 v{Z1}, v{XA+4}, v{XA+5}")
    a(f"v_add_f32 v{Z2}, v{XA+2}, v{XA+6}")
    a(f"s_cmp_lg_u32 s{sSLOW}, 0")
    a("s_cbranch_scc1 V_SLOW")
    a.label("V_BACK")
    a(f"v_lshlrev_b32 v{XB}, 16, v{SVD}")
    a(f"v_and_b32 v{XB+1}, 0xffff0000, v{SVD}")
    a(f"v_add_f32 v{Z2}, v{Z2}, v{SVS}")
    a(f"v_add_f32 v{Z0}, v{Z0}, v{XB}")
    a(f"v_add_f32 v{Z1}, v{Z1}, v{XB+1}")
    node_off(t2,cNode,1)
    a(f"v_cvt_pk_bf16_f32 v{Z2}, v{Z2}, v{Z2}")
    a(f"v_cvt_pk_bf16_f32 v{Z0}, v{Z0}, v{Z1}")
    a(f"buffer_store_short v{Z2}, v{VO2}, {s(sOUT,4)}, s{t2} offen")
    a(f"buffer_store_dword v{Z0}, v{VO1}, {s(sOUT,4)}, s{t2} offen")
    sv_loadV(xNode)
    rotate()
    vexit("VA_TOP")
    a.label("V_SLOW")
    a_skip=lambda: None
    carry([Z0,Z1,Z2],0,1,"V_BACK",a_skip)
    a.label("V_SKIP")
    rotate()
    vexit("VA_TOP0")
    for c in colds: c()
    colds=[]
    FS=32; WS_=64
    WSR=[64+i for i in range(16)]+[80,81,82,84,85,86,88,89,90,92,93,94]+[96,97,98,99]
    CAR=[100,101,102,103,104,105,106,107]
    def sv_loadS(node):
        a(f"s_add_u32 s{t2}, s{sN0}, s{node}")
        a(f"s_min_u32 s{t2}, s{t2}, {N-1}")
        a(f"s_lshl_b32 s{t2}, s{t2}, 10")
        a(f"buffer_load_dword v{SVD}, v{VO1}, {s(sSV,4)}, s{t2} offen")
    a.label("S_START")
    a.stamp(91,96)
    a(f"s_bitcmp1_b32 s{cFl}, {F_EX}")
    a("s_cbranch_scc0 M_DONE")
    a(f"v_mbcnt_lo_u32_b32 v{VO2}, -1, 0")
    a(f"v_mbcnt_hi_u32_b32 v{VO2}, -1, v{VO2}")
    a(f"v_lshrrev_b32 v{VO2}, 4, v{VO2}")
    a(f"v_lshl_add_u32 v{VO1}, v{VO2}, 2, v{C16}")
    if 'lin' in EXP:
        a(f"v_lshrrev_b32 v{VO1}, 2, v{C16}")
        a(f"v_lshl_add_u32 v{VO1}, v{VO2}, 6, v{VO1}")
    a(f"v_mul_u32_u24 v{VO2}, {4*768}, v{VO2}")
    a(f"v_add_u32 v{VO2}, v{VO2}, v{C16}")
    for r in range(4):
        a(f"buffer_load_dwordx4 {v(FS+4*r,4)}, v{VO2}, {s(sWR,4)}, 0 offen offset:{768*r}")
    sv_loadS(cNode)
    a("s_waitcnt vmcnt(1)")
    for r in range(4):
        for d in range(4):
            a(f"v_lshlrev_b32 v{WSR[(2*d)*4+r]}, 16, v{FS+4*r+d}")
            a(f"v_and_b32 v{WSR[(2*d+1)*4+r]}, 0xffff0000, v{FS+4*r+d}")
    a.label("S_TOP0")
    a("s_waitcnt vmcnt(0)")
    a.label("S_TOP")
    claim_top()
    a("s_waitcnt vmcnt(1) lgkmcnt(0)")
    a(f"v_lshlrev_b32 v{SRCW}, 8, v{SRCW}")
    a(f"v_mov_b32 v{SVS}, v{SVD}")
    claim_mid()
    L=a.newlabel("S_NSV")
    a(f"s_bitcmp1_b32 s{xFl}, {F_FIRST}")
    a(f"s_cbranch_scc0 {L}")
    sv_loadS(xNode)
    a.label(L)
    for p in range(4):
        Ga,Gb=G+8*p,G+8*p+4
        for d in range(4):
            a(f"v_perm_b32 v{FS+(2*d)*4+p}, v{Gb+d}, v{Ga+d}, s{sLO}")
            a(f"v_perm_b32 v{FS+(2*d+1)*4+p}, v{Gb+d}, v{Ga+d}, s{sHI}")
        gat(2*p); gat(2*p+1)
    for k in range(8):
        a(f"v_mfma_f32_16x16x32_bf16 {v(FS+4*k,4)}, {v(A,4)}, {v(FS+4*k,4)}, 0")
        if k==2: a(f"v_add_u32_sdwa v{TA}, v{LWA}, v{C8} {SD} src0_sel:WORD_0 src1_sel:DWORD")
        if k==4: a(f"v_add_u32_sdwa v{TA2}, v{LWA}, v{C8} {SD} src0_sel:WORD_1 src1_sel:DWORD")
    a(f"ds_read_b64_tr_b16 {v(A,2)}, v{TA}")
    a(f"ds_read_b64_tr_b16 {v(A+2,2)}, v{TA2}")
    next_desc()
    raw_reads(False)
    for k in range(8):
        a(f"v_mul_f32 v{FS+4*k}, v{FS+4*k}, v{WSR[4*k]}")
        for r in range(1,4): a(f"v_fmac_f32 v{FS+4*k}, v{FS+4*k+r}, v{WSR[4*k+r]}")
    a(f"s_bitcmp1_b32 s{cFl}, {F_FIRST}")
    a("s_cbranch_scc1 S_NOCAR")
    for k in range(8): a(f"v_add_f32 v{FS+4*k}, v{FS+4*k}, v{CAR[k]}")
    a.label("S_NOCAR")
    def sexit(L):
        a(f"s_bitcmp1_b32 s{cFl}, {F_EX}")
        a(f"s_cbranch_scc1 {L}")
        a("s_branch M_DONE")
    a(f"s_and_b32 s{t0}, s{cFl}, {(1<<F_LAST)|(1<<F_VALID)}")
    a(f"s_cmp_eq_u32 s{t0}, {(1<<F_LAST)|(1<<F_VALID)}")
    a("s_cbranch_scc1 S_EPI")
    for k in range(8): a(f"v_mov_b32 v{CAR[k]}, v{FS+4*k}")
    a.label("S_SKIP")
    rotate()
    sexit("S_TOP0")
    a.label("S_EPI")
    ac=lambda k: FS+4*k
    for k in range(4): a(f"v_permlane32_swap_b32 v{ac(k)}, v{ac(k+4)}")
    for k in range(4): a(f"v_add_f32 v{ac(k)}, v{ac(k)}, v{ac(k+4)}")
    a("s_nop 0")
    a(f"v_permlane16_swap_b32 v{ac(0)}, v{ac(2)}")
    a(f"v_permlane16_swap_b32 v{ac(1)}, v{ac(3)}")
    a(f"v_add_f32 v{ac(0)}, v{ac(0)}, v{ac(2)}")
    a(f"v_add_f32 v{ac(1)}, v{ac(1)}, v{ac(3)}")
    a(f"s_cmp_lg_u32 s{sSLOW}, 0")
    a("s_cbranch_scc1 S_SLOW")
    a.label("S_BACK")
    a(f"v_lshlrev_b32 v{ac(2)}, 16, v{SVS}")
    a(f"v_and_b32 v{ac(3)}, 0xffff0000, v{SVS}")
    a(f"v_add_f32 v{ac(0)}, v{ac(0)}, v{ac(2)}")
    a(f"v_add_f32 v{ac(1)}, v{ac(1)}, v{ac(3)}")
    a(f"s_add_u32 s{t2}, s{sN0}, s{cNode}")
    a(f"s_lshl_b32 s{t2}, s{t2}, 10")
    a(f"v_cvt_pk_bf16_f32 v{ac(0)}, v{ac(0)}, v{ac(1)}")
    a(f"buffer_store_dword v{ac(0)}, v{VO1}, {s(sOUT,4)}, s{t2} offen")
    rotate()
    sexit("S_TOP")
    a.label("S_SLOW")
    carry([ac(0),ac(1)],1,0,"S_BACK",lambda: a("s_branch S_SKIP"))
    for c in colds: c()
    a.label("M_DONE")
    if a.stamps:
        a.stamp(93,96)
        a("s_memtime s[96:97]"); a("s_waitcnt lgkmcnt(0)"); a("s_mov_b32 s98, s96")
        a("s_waitcnt vmcnt(0)")
        a.stamp(94,96)
        a(f"s_lshl_b32 s3, s2, 4"); a(f"s_add_u32 s3, s3, s{sWV}")
        a.dump_stamps([84,57,58,59,99,100,90,91,101,93,94,95,98] if PROF else [84,86,85,87,88,89,90,91,92,93,94,95,98],sWS,WS_CARRY,3,0,3)
        a("s_mov_b64 exec, -1")
    a(f"s_cmp_eq_u32 s{sFLAG}, 0")
    a("s_cbranch_scc1 M_END")
    a("s_waitcnt vmcnt(0) lgkmcnt(0)")
    a("s_barrier")
    a(f"s_mov_b32 s{sFIRST}, 0")
    a(f"s_bitcmp1_b32 s{sFLAG}, 0")
    a(f"s_cselect_b32 s{sNEW}, 0, 1")
    a(f"s_cselect_b32 s3, 0, {WIN}")
    a(f"s_add_u32 s{sWIN}, s{sWIN}, s3")
    a("s_branch M_ROUND")
    a.label("M_END")
    a("s_endpgm")
```

```python
import sys, os
from asmlib import *
from consts import *
import k1, k2
HDR=open('standalone__molecular_angular_painn__graph.s.ref').read().split("; Override launch")[0]
def desc(name, nv, ns):
    return f""".amdhsa_kernel {name}
  .amdhsa_next_free_vgpr {nv}
  .amdhsa_next_free_sgpr {ns}
  .amdhsa_accum_offset {(nv+3)//4*4}
  .amdhsa_group_segment_fixed_size 0
  .amdhsa_kernarg_size 88
  .amdhsa_user_sgpr_count 2
  .amdhsa_user_sgpr_kernarg_segment_ptr 1
  .amdhsa_system_sgpr_workgroup_id_x 1
  .amdhsa_float_denorm_mode_32 3
.end_amdhsa_kernel
"""
out=HDR
out+=f"; @launch kernel={KNAME} grid=(256,1,1) block=(1024,1,1) lds={k2.K2_LDS}\n"
out+='.amdgcn_target "amdgcn-amd-amdhsa--gfx950"\n.text\n'
descs=""
bad=False
def both(a):
    k1.gen_k1(a); k2.gen_k2(a)
for name,g in ((KNAME,both),):
    a=Asm(); a.stamps=bool(os.environ.get('STAMPS')); a._lbl=1000*len(descs); g(a)
    if True and 'nocomp' in os.environ.get('EXP',''):
        i0=a.lines.index("VA_TOP0:"); i1=a.lines.index("M_DONE:")
        keep=[l for l in a.lines[i0:i1] if not l.startswith(("v_perm","v_mfma","v_fmac","v_mul_f32","v_cvt","v_add_f32"))]
        a.lines=a.lines[:i0]+keep+a.lines[i1:]
    if True and 'small' in os.environ.get('EXP',''):
        a.lines=[l.replace("v_lshlrev_b32 v83, 8, v83","v_and_b32 v83, 0xfff, v83\n    v_lshlrev_b32 v83, 8, v83") for l in a.lines]
    if True and 'nosv' in os.environ.get('EXP',''):
        a.lines=[l for l in a.lines if not (l.startswith("buffer_load") and "s[12:15]" in l)]
        a.lines=[l.replace("vmcnt(4)","vmcnt(2)") if i>a.lines.index("VA_TOP0:") else l for i,l in enumerate(a.lines)]
    if True and 'nost' in os.environ.get('EXP',''):
        a.lines=[l for l in a.lines if not (l.startswith("buffer_store") and "s[16:19]" in l)]
        a.lines=[l.replace("vmcnt(2)","vmcnt(0)").replace("vmcnt(1)","vmcnt(0)") if i>a.lines.index("VA_TOP0:") else l for i,l in enumerate(a.lines)]
    if True and 'noshort' in os.environ.get('EXP',''):
        a.lines=[l for l in a.lines if not (l.startswith("buffer_store_short") or l.startswith("buffer_load_short"))]
        a.lines=[l.replace("vmcnt(4)","vmcnt(2)") if i>a.lines.index("VA_TOP0:") else l for i,l in enumerate(a.lines)]
    if True:
        svf=os.environ.get('SVF',''); ouf=os.environ.get('OUF','')
        a.lines=[l+" "+svf if (l.startswith("buffer_load") and "s[12:15]" in l and "atomic" not in l) else l for l in a.lines]
        a.lines=[l+" "+ouf if (l.startswith("buffer_store") and "s[16:19]" in l) else l for l in a.lines]
    X=os.environ.get('EXP','')
    if 'nolut' in X: a.lines=[l for l in a.lines if not (l.startswith("buffer_store_short") and "sc1" in l)]
    if 'noatom' in X: a.lines=[l for l in a.lines if not l.startswith("buffer_atomic")]
    if 'endk1' in X:
        i=a.lines.index("M_ENTRY:"); a.lines.insert(i+1,"s_endpgm")
    errs=check(a.lines)
    for e in errs: print(name,e); bad=True
    nv,ns=maxregs(a.lines)
    print(name,"vgpr",nv,"sgpr",ns,"lines",len(a.lines))
    out+=f".globl {name}\n.p2align 8\n.type {name},@function\n"+a.text()
    descs+=".p2align 6\n"+desc(name,nv,ns)
out+='.section .rodata,"a"\n'+descs
dst=sys.argv[1] if len(sys.argv)>1 else 'standalone__molecular_angular_painn__graph.s'
open(dst,'w').write(out)
if bad: sys.exit(1)
```

```python
from asmlib import *
from consts import *
import os
WB=os.environ.get('WB','')
STF='' if WB else 'sc1'
K1X=os.environ.get('K1X','cpf')
AF_=os.environ.get('AFLAG','ws')
LDF=os.environ.get('LDF','')
COMP=True
ALUT=os.environ.get('ALUT','early')
CODEW=4
GEO=os.environ.get('GEO','d16')
PM=os.environ.get('PM','flag')

W2L=0; W1L=102400; HL=139264; K1_LDS=HL+16384
CNT1=0; POSL=256; STG=POSL+75*1024-1024+256+768
STG=POSL
assert STG%16==0 and STG+RECW<=K1_LDS+4096
K1_LDS=max(K1_LDS,STG+RECW)

def srd(a, d, b, size):
    a(f"s_mov_b32 s{d}, s{b}")
    a(f"s_and_b32 s{d+1}, s{b+1}, 0xffff")
    a(f"s_mov_b32 s{d+2}, {size}")
    a(f"s_mov_b32 s{d+3}, 0x00020000")

def publish(a,swv,sDBG,ctr,tgt,vt,sWS=None,st=None,base=0,wb=False):
    L=a.newlabel("P_PUB")
    a(f"s_cmp_lg_u32 s{swv}, 15")
    a(f"s_cbranch_scc1 {L}")
    a(f"v_mov_b32 v{vt}, 1")
    if sWS is not None:
        a(f"v_mbcnt_lo_u32_b32 v{vt+1}, -1, 0")
        a(f"v_lshlrev_b32 v{vt+1}, 8, v{vt+1}")
    a("s_mov_b64 exec, 1")
    if wb:
        a("buffer_wbl2 sc1")
        a("s_waitcnt vmcnt(0)")
    a(f"buffer_atomic_add v{vt}, off, {s(sDBG,4)}, 0 offset:{ctr} sc0")
    a("s_waitcnt vmcnt(0)")
    a(f"v_cmp_eq_u32 vcc, {tgt-1}, v{vt}")
    a("s_and_b64 exec, exec, vcc")
    a(f"s_cbranch_execz {L}_x")
    if sWS is None:
        a(f"v_mov_b32 v{vt}, {tgt}")
        a(f"buffer_store_dword v{vt}, off, {s(sDBG,4)}, 0 offset:{128+ctr} sc1")
    else:
        a("s_mov_b64 exec, 0xff")
        a(f"v_mov_b32 v{vt}, {tgt}")
        a(f"s_mov_b32 s{st}, {WS_FLG+base}")
        a(f"buffer_store_dword v{vt}, v{vt+1}, {s(sWS,4)}, s{st} offen sc1")
    a.label(f"{L}_x")
    a("s_mov_b64 exec, -1")
    a.label(L)

def gen_k1(a):
    sSV,sPOS,sSRC,sDST,sFR,sW1,sW2,sWS,sDBG = 36,40,44,48,52,56,60,64,12
    def fin(isA):
        if isA: a("s_waitcnt vmcnt(0)")
        a.stamp(80,70)
        a("s_barrier")
        if isA: publish(a,3,sDBG,CTR_A,PW,4,sWS,5,0)
        if a.stamps:
            a("s_lshl_b32 s5, s2, 4"); a("s_add_u32 s5, s5, s3")
            a.dump_stamps(range(72,81),sWS,WS_CARRY+(2<<20),5,60,5)
            a("s_mov_b64 exec, -1")
        if isA: a("s_branch M_ENTRY")
    a.label(KNAME)
    a(f"s_cmp_ge_u32 s2, {PW+NTW}")
    a("s_cbranch_scc1 M_END")
    a.stamp(72,70)
    a("s_load_dwordx16 s[16:31], s[0:1], 0")
    a("s_load_dwordx2 s[32:33], s[0:1], 80")
    a("s_load_dwordx2 s[34:35], s[0:1], 72")
    a("v_lshrrev_b32 v1, 6, v0")
    a("v_and_b32 v2, 63, v0")
    a("v_readfirstlane_b32 s3, v1")
    a("v_lshlrev_b32 v3, 4, v0")
    if 'cpf' in K1X:
        a("s_getpc_b64 s[10:11]")
        a("v_lshlrev_b32 v126, 6, v0")
        a(f"s_cmp_ge_u32 s3, {CODEW}")
        a("s_cbranch_scc1 P_NCP")
        a("global_load_dword v127, v126, s[10:11]")
        a.label("P_NCP")
    a("s_waitcnt lgkmcnt(0)")
    srd(a,sSV,16,N*1024); srd(a,sPOS,18,N*6); srd(a,sSRC,20,E*4); srd(a,sDST,22,E*4)
    srd(a,sFR,24,32); srd(a,sW1,26,32768); srd(a,sW2,28,98304); srd(a,sWS,32,WS_CARRY+(4<<20)); srd(a,sDBG,34,256)
    a(f"s_cmp_ge_u32 s2, {PW}")
    a("s_cbranch_scc1 P_TWG")
    SRC=4; DST=12
    NQ4=EPW//4
    a("v_lshrrev_b32 v32, 4, v0")
    a("v_and_b32 v38, 15, v0")
    a("v_lshlrev_b32 v38, 1, v38")
    a(f"buffer_load_ushort v39, v38, {s(sFR,4)}, 0 offen")
    a(f"s_mul_i32 s5, s2, {EPW*4}")
    a(f"v_add_u32 v20, s5, v3")
    a(f"v_add_u32 v21, 16384, v20")
    a(f"buffer_load_dwordx4 {v(SRC,4)}, v20, {s(sSRC,4)}, 0 offen nt")
    a(f"buffer_load_dwordx4 {v(DST,4)}, v20, {s(sDST,4)}, 0 offen nt")
    a(f"s_mov_b32 s34, {E*4}")
    a(f"s_add_u32 s35, s5, {EPW*4}")
    a(f"s_min_u32 s35, s35, s34")
    a(f"v_cmp_gt_u32 s[6:7], s35, v20")
    a(f"v_cmp_gt_u32 s[68:69], s35, v21")
    NW1=(NQ4-1024+63)//64
    a(f"s_cmp_ge_u32 s3, {NW1}")
    a("s_cbranch_scc1 P_A1")
    a(f"buffer_load_dwordx4 {v(SRC+4,4)}, v21, {s(sSRC,4)}, 0 offen nt")
    a(f"buffer_load_dwordx4 {v(DST+4,4)}, v21, {s(sDST,4)}, 0 offen nt")
    a.label("P_A1")
    a("s_lshl_b32 s34, s3, 10")
    a(f"s_add_u32 s34, s34, {POSL}")
    for it in range(5):
        if it==4:
            a(f"s_cmp_ge_u32 s3, {74-64}")
            a("s_cbranch_scc1 P_A2")
        a(f"s_add_u32 m0, s34, {it*16384}")
        a(f"v_add_u32 v22, {it*16384}, v3")
        a(f"buffer_load_dwordx4 v22, {s(sPOS,4)}, 0 offen lds")
    a.label("P_A2")
    a(f"s_cmp_ge_u32 s2, {(LUT_ROWS+63)//64}")
    a("s_cbranch_scc1 P_NOLUT")
    a("s_lshl_b32 s5, s2, 6")
    a("v_add_u32 v52, s5, v32")
    a(f"v_add_u32 v53, {DBASE}, v52")
    a("v_lshlrev_b32 v53, 16, v53")
    def r1(x):
        a(f"v_cvt_pk_bf16_f32 v{x}, v{x}, v{x}")
        a(f"v_and_b32 v{x}, 0xffff0000, v{x}")
    a("v_mul_f32 v54, 0x40490fdb, v53"); r1(54)
    a("v_mul_f32 v54, 0x3e4ccccd, v54"); r1(54)
    a("v_mul_f32 v54, 0.15915494, v54")
    a("v_cos_f32 v54, v54")
    a("v_rcp_f32 v55, v53")
    r1(54)
    a("v_add_f32 v54, 1.0, v54"); r1(54)
    a("v_mul_f32 v54, 0.5, v54"); r1(54)
    a("s_waitcnt vmcnt(6)")
    a("v_lshlrev_b32 v39, 16, v39")
    a("v_mul_f32 v39, v39, v53"); r1(39)
    a("v_mul_f32 v39, 0.15915494, v39")
    a("v_rndne_f32 v56, v39")
    a("v_sub_f32 v39, v39, v56")
    a("v_sin_f32 v39, v39")
    a("v_cmp_ne_u32 s[8:9], 0, v52")
    r1(39)
    a("v_mul_f32 v39, v39, v55"); r1(39)
    a("v_mul_f32 v39, v39, v54")
    a("v_cndmask_b32 v39, 0, v39, s[8:9]")
    a("v_lshl_add_u32 v38, v52, 5, v38")
    a(f"s_mov_b32 s5, {WS_LUT}")
    a("v_mov_b32_dpp v56, v39 quad_perm:[1,1,3,3] row_mask:0xf bank_mask:0xf")
    a("s_mov_b32 exec_lo, 0x55555555")
    a("s_mov_b32 exec_hi, 0x55555555")
    a("v_cvt_pk_bf16_f32 v39, v39, v56")
    a(f"buffer_store_dword v39, v38, {s(sWS,4)}, s5 offen sc1")
    a("s_mov_b64 exec, -1")
    a("s_or_b32 s5, s2, s3")
    a("s_cbranch_scc1 P_NOLUT")
    a("v_lshlrev_b32 v38, 8, v2")
    a("v_mov_b32 v39, 0")
    a(f"s_mov_b32 s5, {WS_FLG}")
    a("s_mov_b64 exec, 0xffff")
    a(f"buffer_store_dword v39, v38, {s(sWS,4)}, s5 offen sc1")
    a("s_mov_b64 exec, -1")
    a.label("P_NOLUT")
    a("v_lshlrev_b32 v22, 2, v2")
    a("v_mov_b32 v23, 0")
    a(f"ds_write_b32 v22, v23 offset:{CNT1}")
    a("v_mov_b32 v23, 1")
    a("s_mov_b32 s5, 0x322bcc77")
    a(f"s_mov_b32 s34, {DCUT<<16}")
    a(f"s_movk_i32 s35, {-NB}")
    a("s_waitcnt vmcnt(0) lgkmcnt(0)")
    a.stamp(73,70)
    a("s_barrier")
    a.stamp(74,70)
    a(f"s_cmp_ge_u32 s2, {NLW}")
    a("s_cbranch_scc1 P_NOLP")
    publish(a,3,sDBG,CTR_L,NLW,24)
    a.label("P_NOLP")
    REC=24; BINR=48; RANK=56; POS=64; SH=80; T=88
    msk=lambda e: f"s[{84+2*e}:{85+2*e}]"
    def unpack_pos(e, o):
        lo,hi=POS+2*e,POS+2*e+1
        a(f"v_alignbit_b32 v{o+1}, v{hi}, v{lo}, v{SH+e}")
        a(f"v_lshrrev_b32 v{o+2}, v{SH+e}, v{hi}")
        a(f"v_lshlrev_b32 v{o}, 16, v{o+1}")
        a(f"v_and_b32 v{o+1}, 0xffff0000, v{o+1}")
        a(f"v_lshlrev_b32 v{o+2}, 16, v{o+2}")
    def round3(x, t):
        a(f"v_cvt_pk_bf16_f32 v{t}, v{x}, v{x+1}")
        a(f"v_cvt_pk_bf16_f32 v{x+2}, v{x+2}, v{x+2}")
        a(f"v_lshlrev_b32 v{x}, 16, v{t}")
        a(f"v_and_b32 v{x+1}, 0xffff0000, v{t}")
        a(f"v_and_b32 v{x+2}, 0xffff0000, v{x+2}")
    def round1(x):
        a(f"v_cvt_pk_bf16_f32 v{x}, v{x}, v{x}")
        a(f"v_and_b32 v{x}, 0xffff0000, v{x}")
    for rnd in range(2):
        if rnd==1:
            for e in range(4,8): a(f"s_mov_b64 {msk(e)}, 0")
            a(f"s_cmp_ge_u32 s3, {NW1}")
            a("s_cbranch_scc1 P_A3")
        vm = "s[6:7]" if rnd==0 else "s[68:69]"
        if GEO=='d16':
            def rdpos(k):
                for w,base in ((0,SRC),(1,DST)):
                    a(f"v_mul_u32_u24 v{T+10+w}, 6, v{base+4*rnd+k}")
                    for c in range(3):
                        a(f"ds_read_u16_d16_hi v{POS+6*k+3*w+c}, v{T+10+w} offset:{POSL+2*c}")
            rdpos(0)
            if rnd: a('s_waitcnt lgkmcnt(9)')
            rdpos(1)
        else:
            for k in range(4):
                for w,base in ((0,SRC),(1,DST)):
                    e2=2*k+w
                    a(f"v_mul_u32_u24 v{SH+e2}, 6, v{base+4*rnd+k}")
                    a(f"v_and_b32 v{T+10+w}, -4, v{SH+e2}")
                    a(f"ds_read2_b32 {v(POS+2*e2,2)}, v{T+10+w} offset0:{POSL//4} offset1:{POSL//4+1}")
                    a(f"v_lshlrev_b32 v{SH+e2}, 3, v{SH+e2}")
        for k in range(4):
            e=4*rnd+k
            Q=T+6; X=T+9
            if GEO=='d16':
                A_=POS+6*k; B_=A_+3
                a(f"s_waitcnt lgkmcnt({6 if k<3 else 0})")
                for c in range(3): a(f"v_sub_f32 v{A_+c}, v{A_+c}, v{B_+c}")
                if k+2<4: rdpos(k+2)
            else:
                A_=T; B_=T+3
                a(f"s_waitcnt lgkmcnt({6-2*k})")
                unpack_pos(2*k,A_); unpack_pos(2*k+1,B_)
                for c in range(3): a(f"v_sub_f32 v{A_+c}, v{A_+c}, v{B_+c}")
            round3(A_,X)
            for c in range(3): a(f"v_mul_f32 v{Q+c}, v{A_+c}, v{A_+c}")
            round3(Q,X)
            a(f"v_add_f32 v{Q}, v{Q}, v{Q+1}")
            a(f"v_add_f32 v{Q}, v{Q}, v{Q+2}")
            round1(Q)
            a(f"v_add_f32 v{Q}, s5, v{Q}")
            round1(Q)
            a(f"v_sqrt_f32 v{Q}, v{Q}")
            a(f"v_mul_u32_u24 v{BINR+e}, 2675, v{DST+e}")
            round1(Q)
            a(f"v_rcp_f32 v{Q+1}, v{Q}")
            a(f"v_lshrrev_b32 v{BINR+e}, 19, v{BINR+e}")
            a(f"v_cmp_gt_u32 {msk(e)}, s34, v{Q}")
            a(f"v_mad_i32_i24 v{X}, v{BINR+e}, s35, v{DST+e}")
            a(f"v_lshlrev_b32 v{BINR+e}, 2, v{BINR+e}")
            a(f"s_and_b64 {msk(e)}, {msk(e)}, {vm}")
            for c in range(3): a(f"v_mul_f32 v{A_+c}, v{A_+c}, v{Q+1}")
            a(f"v_max_u32 v{Q}, {(DBASE+1)<<16}, v{Q}")
            a(f"v_cvt_pk_bf16_f32 v{REC+3*e}, v{A_}, v{A_+1}")
            a(f"v_cvt_pk_bf16_f32 v{B_}, v{A_+2}, 0")
            a(f"v_subrev_u32 v{Q}, {DBASE<<16}, v{Q}")
            a(f"v_lshl_or_b32 v{REC+3*e+1}, v{SRC+e}, 16, v{B_}")
            a(f"v_lshrrev_b32 v{Q}, 11, v{Q}")
            a(f"v_lshl_or_b32 v{REC+3*e+2}, v{X}, 18, v{Q}")
        for k in range(4):
            e=4*rnd+k
            a(f"s_mov_b64 exec, {msk(e)}")
            a(f"ds_add_rtn_u32 v{RANK+e}, v{BINR+e}, v23 offset:{CNT1}")
        a(f"s_mov_b64 exec, -1")
    a.label("P_A3")
    a("s_waitcnt lgkmcnt(0)")
    a.stamp(75,70)
    a("s_barrier")
    a.stamp(76,70)
    C=T; S_=T+1
    a(f"ds_read_b32 v{C}, v22 offset:{CNT1}")
    a("s_waitcnt lgkmcnt(0)")
    a(f"v_mov_b32 v{S_}, v{C}")
    for sh in (1,2,4,8):
        a.nop(2)
        a(f"v_add_u32_dpp v{S_}, v{S_}, v{S_} row_shr:{sh} row_mask:0xf bank_mask:0xf bound_ctrl:0")
    a.nop(2)
    a(f"v_add_u32_dpp v{S_}, v{S_}, v{S_} row_bcast:15 row_mask:0xa bank_mask:0xf")
    a.nop(2)
    a(f"v_add_u32_dpp v{S_}, v{S_}, v{S_} row_bcast:31 row_mask:0xc bank_mask:0xf")
    a.nop(1)
    a(f"v_readlane_b32 s34, v{S_}, 63")
    a(f"v_sub_u32 v{S_}, v{S_}, v{C}")
    for e in range(8):
        a(f"ds_bpermute_b32 v{BINR+e}, v{BINR+e}, v{S_}")
    a("s_cmp_lg_u32 s3, 15")
    a("s_cbranch_scc1 P_NOOFF")
    a(f"v_lshl_or_b32 v{C}, v{C}, 16, v{S_}")
    a(f"v_lshlrev_b32 v{T+2}, 8, v2")
    a(f"s_lshl_b32 s5, s2, 2")
    a(f"s_add_u32 s5, s5, {WS_OFF}")
    a(f"buffer_store_dword v{C}, v{T+2}, {s(sWS,4)}, s5 offen sc1")
    a.label("P_NOOFF")
    a(f"s_mov_b32 s35, {STG}")
    for e in range(8):
        if e==4:
            a(f"s_cmp_ge_u32 s3, {NW1}")
            a("s_cbranch_scc1 P_A4")
        if e==0: a("s_waitcnt lgkmcnt(0)")
        a(f"v_add_u32 v{BINR+e}, v{BINR+e}, v{RANK+e}")
        a(f"v_mad_u32_u24 v{BINR+e}, v{BINR+e}, 12, s35")
        a(f"s_mov_b64 exec, {msk(e)}")
        a(f"ds_write2_b32 v{BINR+e}, v{REC+3*e}, v{REC+3*e+1} offset0:0 offset1:1")
        a(f"ds_write_b32 v{BINR+e}, v{REC+3*e+2} offset:8")
        a(f"s_mov_b64 exec, -1")
    a.label("P_A4")
    a("s_waitcnt lgkmcnt(0)")
    a.stamp(77,70)
    a("s_barrier")
    a.stamp(78,70)
    a("s_mul_i32 s34, s34, 12")
    a(f"s_mul_i32 s5, s2, {RECW}")
    a(f"s_add_u32 s5, s5, {WS_REC}")
    a(f"v_add_u32 v{T}, {STG}, v3")
    a(f"v_add_u32 v{T+1}, {STG+65536}, v3")
    a("s_lshl_b32 s35, s3, 10")
    NIT=(RECW+16383)//16384
    for it in range(NIT):
        a(f"s_cmp_ge_u32 s35, s34")
        a("s_cbranch_scc1 P_A5")
        if it<4: a(f"ds_read_b128 {v(24+4*(it&1),4)}, v{T} offset:{it*16384}")
        else: a(f"ds_read_b128 {v(24+4*(it&1),4)}, v{T+1} offset:{(it-4)*16384}")
        a(f"v_add_u32 v{T+2}, {it*16384}, v3")
        a(f"v_cmp_gt_u32 vcc, s34, v{T+2}")
        a("s_add_u32 s35, s35, 16384")
        a("s_mov_b64 exec, vcc")
        a("s_waitcnt lgkmcnt(0)")
        a(f"buffer_store_dwordx4 {v(24+4*(it&1),4)}, v{T+2}, {s(sWS,4)}, s5 offen sc1")
        a("s_mov_b64 exec, -1")
    a.label("P_A5")
    a.stamp(79,70)
    fin(True)
    a.label("P_TWG")
    a(f"s_sub_u32 s4, s2, {PW}")
    a("s_and_b32 s6, s3, 3")
    a("s_lshr_b32 s7, s3, 2")
    WB=64
    SF=4
    VV=20
    VPOS=os.environ.get('VPOS','late')
    a("v_lshrrev_b32 v32, 4, v0")
    a("v_and_b32 v33, 15, v0")
    a("v_lshrrev_b32 v34, 4, v2")
    a("s_lshl_b32 s9, s4, 6")
    a("s_lshl_b32 s8, s6, 4")
    a("s_add_u32 s5, s9, s8")
    a("v_add_u32 v35, s5, v33")
    a("v_lshlrev_b32 v36, 10, v35")
    a("v_lshl_add_u32 v36, v34, 4, v36")
    a("s_lshl_b32 s5, s7, 6")
    a("v_add_u32 v36, s5, v36")
    def ldv():
        for j in range(3):
            a(f"buffer_load_dwordx4 {v(VV+4*j,4)}, v36, {s(sSV,4)}, 0 offen offset:{256*(1+j)} {LDF}")
    if VPOS=='first': ldv()
    a("v_add_u32 v37, s9, v32")
    a("v_lshlrev_b32 v37, 10, v37")
    a("v_xor_b32 v38, v33, v32")
    a("v_and_b32 v38, 15, v38")
    a("v_lshl_add_u32 v37, v38, 4, v37")
    a("s_lshl_b32 s5, s3, 10")
    a(f"s_add_u32 m0, s5, {HL}")
    a("s_nop 0")
    a(f"buffer_load_dwordx4 v37, {s(sSV,4)}, 0 offen {LDF} lds")
    for rb in range(2):
        a(f"s_mov_b32 s5, {rb*16384}")
        a(f"buffer_load_dwordx4 {v(WB+4*rb,4)}, v3, {s(sW1,4)}, s5 offen")
    a("v_mul_u32_u24 v37, 768, v32")
    a("v_lshl_add_u32 v37, v33, 4, v37")
    for rb in range(2):
        a(f"s_mov_b32 s5, {rb*49152}")
        for th in range(3):
            a(f"buffer_load_dwordx4 {v(WB+8+4*(rb*3+th),4)}, v37, {s(sW2,4)}, s5 offen offset:{th*256}")
    if VPOS=='mid': ldv()
    nv = 3 if VPOS=='mid' else 0
    a("v_lshlrev_b32 v38, 1, v33")
    a(f"v_cmp_gt_u32 vcc, {N}, v35")
    a("v_lshlrev_b32 v40, 8, v35")
    a("v_lshl_add_u32 v40, v34, 4, v40")
    a(f"v_mov_b32 v41, {BIG}")
    a("v_cndmask_b32 v40, v41, v40, vcc")
    a("v_and_b32 v41, 0x33, v32")
    a("v_and_b32 v42, 4, v32")
    a("v_lshl_or_b32 v41, v42, 1, v41")
    a("v_and_b32 v42, 8, v32")
    a("v_lshrrev_b32 v42, 1, v42")
    a("v_or_b32 v41, v41, v42")
    a("v_mul_u32_u24 v41, 288, v41")
    a("v_lshl_add_u32 v41, v33, 4, v41")
    a(f"v_add_u32 v41, {W1L}, v41")
    a("v_mul_u32_u24 v42, 800, v32")
    a("v_lshrrev_b32 v43, 2, v33")
    a("v_lshl_add_u32 v42, v43, 6, v42")
    a("v_and_b32 v43, 3, v33")
    a("v_lshl_add_u32 v42, v43, 3, v42")
    a("v_add_u32 v43, 51200, v42")
    a("v_and_b32 v44, 3, v2")
    a("v_bfe_u32 v45, v2, 2, 2")
    a("v_and_b32 v46, 1, v34")
    a("v_lshrrev_b32 v47, 1, v34")
    a("v_lshl_add_u32 v46, v46, 2, v45")
    a("v_lshl_add_u32 v46, v47, 4, v46")
    a("v_mul_u32_u24 v46, 288, v46")
    a("v_lshl_add_u32 v46, v44, 3, v46")
    a("s_lshl_b32 s5, s7, 6")
    a(f"s_add_u32 s8, s5, {W1L}")
    a("v_add_u32 v46, s8, v46")
    a("v_lshl_add_u32 v47, v34, 2, v45")
    a("v_mul_u32_u24 v47, 800, v47")
    a("v_lshl_add_u32 v47, v44, 3, v47")
    a("v_add_u32 v47, s5, v47")
    a("v_add_u32 v48, 51200, v47")
    a("s_lshl_b32 s8, s6, 12")
    a(f"s_add_u32 s5, s8, {W1L}")
    a("v_lshlrev_b32 v49, 4, v2")
    a("v_add_u32 v49, s5, v49")
    a("s_lshl_b32 s5, s7, 10")
    a("v_add_u32 v50, s5, v49")
    a(f"s_add_u32 s8, s8, {HL}")
    a("v_lshlrev_b32 v51, 8, v33")
    a("v_add_u32 v51, s8, v51")
    a("v_xor_b32 v52, v34, v33")
    for kk in range(4):
        a(f"v_xor_b32 v{53+kk}, {4*kk}, v52")
        a(f"v_lshl_add_u32 v{53+kk}, v{53+kk}, 4, v51")
    a(f"s_waitcnt vmcnt({6+nv})")
    for rb in range(2):
        a(f"ds_write_b128 v41, {v(WB+4*rb,4)} offset:{rb*64*288}")
    a("s_waitcnt lgkmcnt(0)")
    a.stamp(73,70)
    a("s_barrier")
    AF=96
    D=64
    D1=52
    def rd1(t, buf):
        for kk in range(4):
            for z in range(2):
                a(f"ds_read_b64_tr_b16 {v(AF+16*buf+4*kk+2*z,2)}, v46 offset:{(32*kk+8*z)*288+t*32}")
    def rd2(i, buf):
        part,zz=i>>1,i&1
        for kk in range(4):
            for z in range(2):
                base = 47 if kk<2 else 48
                a(f"ds_read_b64_tr_b16 {v(AF+16*buf+4*kk+2*z,2)}, v{base} offset:{(32*(kk&1)+16*z)*800+part*256+zz*32}")
    for kk in range(4):
        a(f"ds_read_b128 {v(SF+4*kk,4)}, v{53+kk}")
    rd1(0,0)
    if VPOS=='late': ldv(); nv=3
    a("s_waitcnt lgkmcnt(7)")
    rd1(1,1)
    a.stamp(74,70)
    for t in range(2):
        a(f"s_waitcnt lgkmcnt({8 if t==0 else 0})")
        for kk in range(4):
            c = "0" if kk==0 else v(D1+4*t,4)
            a(f"v_mfma_f32_16x16x32_bf16 {v(D1+4*t,4)}, {v(AF+16*t+4*kk,4)}, {v(SF+4*kk,4)}, {c}")
    a("s_barrier")
    a("s_mov_b32 s5, 0xbfb8aa3b")
    a.nop(2)
    H=4
    TMP=60
    for p in range(4):
        x0,x1=D1+2*p,D1+2*p+1
        t0,t1=TMP+2*(p&1),TMP+2*(p&1)+1
        a(f"v_cvt_pk_bf16_f32 v{x1}, v{x0}, v{x1}")
        a(f"v_lshlrev_b32 v{x0}, 16, v{x1}")
        a(f"v_and_b32 v{x1}, 0xffff0000, v{x1}")
        a(f"v_mul_f32 v{t0}, s5, v{x0}")
        a(f"v_mul_f32 v{t1}, s5, v{x1}")
        a(f"v_exp_f32 v{t0}, v{t0}")
        a(f"v_exp_f32 v{t1}, v{t1}")
        a("s_nop 0")
        a(f"v_add_f32 v{t0}, 1.0, v{t0}")
        a(f"v_add_f32 v{t1}, 1.0, v{t1}")
        a(f"v_rcp_f32 v{t0}, v{t0}")
        a(f"v_rcp_f32 v{t1}, v{t1}")
        a("s_nop 0")
        a(f"v_mul_f32 v{x0}, v{x0}, v{t0}")
        a(f"v_mul_f32 v{x1}, v{x1}, v{t1}")
        a(f"v_cvt_pk_bf16_f32 v{AF+p}, v{x0}, v{x1}")
    a(f"ds_write_b128 v50, {v(AF,4)}")
    for rb in range(2):
        a(f"s_waitcnt vmcnt({3+nv-3*rb})")
        for th in range(3):
            r=WB+8+4*(rb*3+th)
            a(f"ds_write2_b64 v{42+rb}, {v(r,2)}, {v(r+2,2)} offset0:{32*th} offset1:{32*th+4}")
    a("s_waitcnt lgkmcnt(0)")
    a.stamp(75,70)
    a("s_barrier")
    a.stamp(76,70)
    for kk in range(4):
        a(f"ds_read_b128 {v(H+4*kk,4)}, v49 offset:{kk*1024}")
    rd2(0,0)
    buf=0
    OUT=88
    a(f"s_mov_b32 s34, {WS_TS}")
    a("s_lshl_b32 s5, s7, 6")
    a("s_add_u32 s34, s34, s5")
    a(f"s_mul_i32 s35, s7, {TSZ}")
    for i in range(6):
        if i+1<6: a("s_waitcnt lgkmcnt(7)"); rd2(i+1,buf^1); a("s_waitcnt lgkmcnt(8)")
        else: a("s_waitcnt lgkmcnt(0)")
        for kk in range(4):
            c = "0" if kk==0 else v(D+4*i,4)
            a(f"v_mfma_f32_16x16x32_bf16 {v(D+4*i,4)}, {v(AF+16*buf+4*kk,4)}, {v(H+4*kk,4)}, {c}")
        buf^=1
        if i==3:
            for pp in range(4):
                a(f"v_cvt_pk_bf16_f32 v{OUT+pp}, v{D+2*pp}, v{D+2*pp+1}")
            a(f"buffer_store_dwordx4 {v(OUT,4)}, v40, {s(sWS,4)}, s34 offen {STF}")
    a.stamp(77,70)
    a("s_waitcnt vmcnt(1)")
    a.stamp(78,70)
    for pp in range(4):
        o=OUT+4*((pp+1)&1)
        x0,x1=D+8+2*pp,D+8+2*pp+1
        a(f"v_cvt_pk_bf16_f32 v{x1}, v{x0}, v{x1}")
        a(f"v_lshlrev_b32 v{x0}, 16, v{x1}")
        a(f"v_and_b32 v{x1}, 0xffff0000, v{x1}")
        for j in range(3):
            vv=VV+4*j+pp
            t0,t1=52+2*j,53+2*j
            a(f"v_lshlrev_b32 v{t0}, 16, v{vv}")
            a(f"v_and_b32 v{t1}, 0xffff0000, v{vv}")
            a(f"v_mul_f32 v{t0}, v{t0}, v{x0}")
            a(f"v_mul_f32 v{t1}, v{t1}, v{x1}")
            a(f"v_cvt_pk_bf16_f32 v{o+j}, v{t0}, v{t1}")
        a(f"v_cvt_pk_bf16_f32 v{o+3}, v{D+16+2*pp}, v{D+16+2*pp+1}")
        if COMP:
            a(f"v_and_b32 v58, 0x8000, v{o+3}")
            a(f"v_bfe_u32 v59, v{o+3}, 16, 15")
            a(f"v_lshlrev_b32 v59, 15, v59")
            a(f"v_min_u32 v58, v58, v59")
            a(f"v_lshlrev_b32 v58, 1, v58")
            a(f"v_sub_u32 v{o+3}, v{o+3}, v58")
        a(f"buffer_store_dwordx4 {v(o,4)}, v40, {s(sWS,4)}, s35 offen offset:{64*pp} {STF}")
    a.stamp(79,70)
    fin(False)
```

```python
from asmlib import *
from consts import *
from k1 import srd, COMP, PM, publish, AF_, WB, ALUT
import os
EXP=os.environ.get('EXP','')
SLP=int(os.environ.get('SLP','1'))
DEVTO=bool(os.environ.get('DEVTO'))
GI=int(os.environ.get('GI','1'))

CNTL=0; CLAIML=784; POOLC=788; FLAGL=792; TTL=800
NVU=NB//2; NU=NVU+NQ
LAL=2368; NBK=285; POOL=NBK-NB; RECL=LAL+(NBK*68+15)//16*16; LUTL=163840-LUT_BYTES; K2_LDS=163840
assert TTL+8*(NU+24)<=LAL and RECL+NBK*272<=LUTL and RECL%16==0
NCH=10; WIN=16*NCH
CARRY_WG=392*512
F_VALID,F_S,F_EX,F_FIRST,F_LAST=0,1,2,3,4
SD="dst_sel:DWORD dst_unused:UNUSED_PAD"

def gen_k2(a):
    t0,t1,t2,t3=4,5,6,7
    sT,sSV,sOUT,sWS,sWR=8,12,16,20,24
    sSB,sVB=28,30
    sWV,sQ,sBIN,sN0,sWIN,sNEW,sFIRST,sFLAG,sMORE,sLO,sHI=range(32,43)
    cCnt,cNode,cFl=43,44,45
    xBlk,xCnt,xNode,xFl=46,47,48,49
    nBlk,nCnt,nNode,nFl=50,51,52,53
    sP2,sSLOW=54,55
    sPEND=56
    sWA,sWB,sNEED,sEND=76,77,78,79
    G=0; F=32; Y=56; DW=64; XA=80; XB=88; WV=96; WR=104; A=108; R=112; LWA=116; LWP=117; SVD=118; SVS=119
    PLA,PLAP,PSRC,C8,C8P,C16,VO1,VO2=range(120,128)
    SRCW=XA+3; CLM=XA+7; TA=XB+3; TA2=XB+7

    a.label("M_ENTRY")
    a.stamp(84,96)
    a("s_load_dwordx2 s[4:5], s[0:1], 0")
    a("s_load_dwordx4 s[44:47], s[0:1], 56")
    a("s_load_dwordx2 s[6:7], s[0:1], 80")
    a("s_load_dwordx2 s[48:49], s[0:1], 72")
    a(f"s_mov_b32 s{sWV}, s3")
    a("s_and_b32 s3, s2, 7")
    a(f"s_and_b32 s{sQ}, s3, 3")
    a("s_lshr_b32 s3, s3, 2")
    a("s_lshl_b32 s3, s3, 5")
    a(f"s_lshr_b32 s{sBIN}, s2, 3")
    a(f"s_add_u32 s{sBIN}, s{sBIN}, s3")
    a(f"s_mul_i32 s{sN0}, s{sBIN}, {NB}")
    a(f"s_mov_b32 s{sWIN}, 0")
    a(f"s_mov_b32 s{sNEW}, 1")
    a(f"s_mov_b32 s{sFIRST}, 1")
    a(f"s_mov_b32 s{sLO}, 0x05040100")
    a(f"s_mov_b32 s{sHI}, 0x07060302")
    a("s_waitcnt lgkmcnt(0)")
    srd(a,sWS,6,WS_CARRY+256*CARRY_WG)
    sDBG=80
    srd(a,sDBG,48,256)
    def poll(ctr, target, wave=0, vt=25, base=None):
        L=a.newlabel("M_POLL"); LE=a.newlabel("M_POLLE")
        a(f"s_cmp_lg_u32 s{sWV}, {wave}")
        a(f"s_cbranch_scc1 {LE}")
        if DEVTO: a(f"s_mov_b32 s{t1}, 0")
        a("s_mov_b64 exec, 1")
        if base is not None:
            a(f"s_and_b32 s{t2}, s2, 7")
            a(f"s_lshl_b32 s{t2}, s{t2}, 8")
            a(f"s_add_u32 s{t2}, s{t2}, {WS_FLG+base}")
        a.label(L)
        if base is None: a(f"buffer_load_dword v{vt}, off, {s(sDBG,4)}, 0 offset:{128+ctr} sc1")
        else: a(f"buffer_load_dword v{vt}, off, {s(sWS,4)}, s{t2} sc1")
        a("s_waitcnt vmcnt(0)")
        a(f"v_readfirstlane_b32 s{t0}, v{vt}")
        if DEVTO:
            a(f"s_add_u32 s{t1}, s{t1}, 1")
            a(f"s_cmp_gt_u32 s{t1}, 20000")
            a(f"s_cselect_b32 s{t0}, {target}, s{t0}")
        LX=a.newlabel("M_POLLX")
        a(f"s_cmp_eq_u32 s{t0}, {target}")
        a(f"s_cbranch_scc1 {LX}")
        a(f"s_sleep {SLP}")
        a(f"s_branch {L}")
        a.label(LX)
        a("s_mov_b64 exec, -1")
        a.label(LE)
    srd(a,sSV,4,N*1024); srd(a,sOUT,46,N*1024); srd(a,sWR,44,16*768)
    a(f"s_mul_i32 s3, s{sQ}, {TSZ}")
    a(f"s_add_u32 s{sVB}, s6, s3")
    a(f"s_addc_u32 s{sVB+1}, s7, 0")
    a(f"s_and_b32 s{sVB+1}, s{sVB+1}, 0xffff")
    a(f"s_add_u32 s{sSB}, s6, {WS_TS}")
    a(f"s_addc_u32 s{sSB+1}, s7, 0")
    a(f"s_and_b32 s{sSB+1}, s{sSB+1}, 0xffff")
    a(f"s_mov_b32 s{sT+2}, {TSZ}")
    a(f"s_mov_b32 s{sT+3}, 0x00020000")
    T16=91
    a(f"v_lshlrev_b32 v{T16}, 4, v0")
    poll(CTR_L,NLW)
    a("s_waitcnt vmcnt(0)")
    a("s_barrier")
    a(f"s_lshl_b32 s{t0}, s{sWV}, 10")
    a(f"s_add_u32 s{t0}, s{t0}, {LUTL}")
    for it in range(4):
        a(f"s_mov_b32 s3, {WS_LUT+it*16384}")
        if it==3:
            a(f"s_cmp_eq_u32 s{sWV}, 15")
            a(f"s_cselect_b32 s{t1}, 1024, 0")
            a(f"s_sub_u32 s{t0}, s{t0}, s{t1}")
            a(f"s_sub_u32 s3, s3, s{t1}")
        a(f"s_add_u32 m0, s{t0}, {it*16384}")
        a("s_nop 0")
        a(f"buffer_load_dwordx4 v{T16}, {s(sWS,4)}, s3 offen lds")
    a(f"s_cmp_lt_u32 s2, {PW}")
    a("s_cbranch_scc1 M_ROUND")
    if WB!='late': publish(a,sWV,sDBG,CTR_T,NTW,24,sWS,t0,2048,wb=bool(WB))
    a.label("M_ROUND")
    a(f"s_mov_b32 s{sT}, s{sVB}")
    a(f"s_mov_b32 s{sT+1}, s{sVB+1}")
    TID=95; LANE=94; N16=93; GAM=92; T16=91; PAIR=90; GG=89
    a(f"v_mbcnt_lo_u32_b32 v{LANE}, -1, 0")
    a(f"v_mbcnt_hi_u32_b32 v{LANE}, -1, v{LANE}")
    a(f"s_lshl_b32 s3, s{sWV}, 6")
    a(f"v_add_u32 v{TID}, s3, v{LANE}")
    a(f"v_lshrrev_b32 v{GAM}, 4, v{TID}")
    a(f"v_and_b32 v{N16}, 15, v{LANE}")
    a(f"v_lshlrev_b32 v{T16}, 4, v{TID}")
    WRAW=108
    a(f"v_lshrrev_b32 v{GG}, 4, v{LANE}")
    a(f"v_mul_u32_u24 v5, {4*768}, v{GG}")
    a(f"v_and_b32 v6, 3, v{N16}")
    a(f"v_lshrrev_b32 v7, 2, v{N16}")
    a(f"v_lshl_add_u32 v{PAIR}, v6, 2, v7")
    a(f"v_lshl_add_u32 v5, v{PAIR}, 2, v5")
    a(f"s_lshl_b32 s3, s{sQ}, 6")
    for r in range(4):
        a(f"buffer_load_dword v{WRAW+r}, v5, {s(sWR,4)}, s3 offen offset:{256+768*r}")
        a(f"buffer_load_dword v{WRAW+4+r}, v5, {s(sWR,4)}, s3 offen offset:{512+768*r}")
    a("v_mov_b32 v8, 0"); a("v_mov_b32 v9, 0xffff0000"); a("v_mov_b32 v10, 0"); a("v_mov_b32 v11, 0xffff0000")
    a("v_mov_b32 v12, 0"); a("v_mov_b32 v13, 0"); a("v_mov_b32 v14, 0"); a("v_mov_b32 v15, 0")
    a(f"ds_write_b128 v{T16}, v[12:15]")
    a(f"v_add_u32 v16, {RECL}, v{T16}")
    for it in range(4):
        a(f"ds_write_b128 v16, v[8:11] offset:{it*16384}")
    a(f"v_add_u32 v17, {RECL+65536}, v{T16}")
    a(f"v_cmp_gt_u32 vcc, {(LUTL-RECL-65536)//16}, v{TID}")
    a("s_mov_b64 exec, vcc")
    a("ds_write_b128 v17, v[8:11]")
    a(f"v_cmp_gt_u32 vcc, {(RECL-16384)//16}, v{TID}")
    a("s_mov_b64 exec, vcc")
    a(f"ds_write_b128 v{T16}, v[12:15] offset:16384")
    a("s_mov_b64 exec, -1")
    a(f"v_bfe_u32 v22, v{LANE}, 2, 2")
    a(f"v_lshlrev_b32 v{PLA}, 4, v22")
    a(f"v_lshl_add_u32 v{PLA}, v{GG}, 2, v{PLA}")
    a(f"v_and_b32 v23, 3, v{LANE}")
    a(f"v_lshlrev_b32 v{C8}, 3, v23")
    a(f"v_add_u32 v{C8}, {LUTL}, v{C8}")
    a(f"v_lshlrev_b32 v{PLAP}, 2, v{PAIR}")
    a(f"v_lshlrev_b32 v{PSRC}, 6, v23")
    a(f"v_lshl_add_u32 v{PSRC}, v{GG}, 4, v{PSRC}")
    a(f"v_and_b32 v23, 4, v{LANE}")
    a(f"v_lshl_add_u32 v{PSRC}, v23, 1, v{PSRC}")
    a(f"v_lshlrev_b32 v{C8P}, 3, v{GG}")
    a(f"v_add_u32 v{C8P}, {LUTL}, v{C8P}")
    a(f"v_lshlrev_b32 v{C16}, 4, v{N16}")
    a(f"v_lshrrev_b32 v22, 1, v{GG}")
    a(f"v_and_b32 v23, 1, v{GG}")
    a(f"v_lshlrev_b32 v{VO1}, 10, v22")
    a(f"v_lshl_add_u32 v{VO1}, v{N16 if 'lin' in EXP else PAIR}, 2, v{VO1}")
    a(f"s_lshl_b32 s3, s{sQ}, 6")
    a(f"s_add_u32 s3, s3, 256")
    a(f"v_add_u32 v{VO1}, s3, v{VO1}")
    a(f"v_lshl_add_u32 v{VO2}, v23, 1, v{VO1}")
    a(f"v_add_u32 v{VO2}, 512, v{VO2}")
    a(f"v_lshl_add_u32 v{VO1}, v23, 8, v{VO1}")
    a(f"v_mov_b32 v{SVS}, 0")
    if 'wide' in EXP:
        a(f"v_lshrrev_b32 v22, 3, v{LANE}")
        a(f"v_cmp_lt_u32 vcc, 2, v22")
        a(f"v_add_u32 v23, 1, v22")
        a("s_nop 0")
        a(f"v_cndmask_b32 v22, v22, v23, vcc")
        a(f"v_lshlrev_b32 v{VO1}, 8, v22")
        a(f"v_and_b32 v23, 7, v{LANE}")
        a(f"v_lshl_add_u32 v{VO1}, v23, 3, v{VO1}")
        a(f"v_add_u32 v{VO1}, s3, v{VO1}")
        a(f"v_cmp_gt_u32 vcc, 48, v{LANE}")
        a(f"v_mov_b32 v23, {BIG}")
        a("s_nop 0")
        a(f"v_cndmask_b32 v{VO1}, v23, v{VO1}, vcc")
    a("v_mov_b32 v16, 33")
    if AF_=='byte':
        assert PW%4==0
        a(f"s_cmp_lg_u32 s{sWV}, 0")
        a("s_cbranch_scc1 M_PAE")
        a(f"v_lshlrev_b32 v24, 2, v{LANE}")
        if DEVTO: a(f"s_mov_b32 s{t1}, 0")
        a(f"s_mov_b32 s{t0}, 0x01010101")
        a(f"s_mov_b64 exec, {(1<<(PW//4))-1}")
        a.label("M_PA")
        a(f"buffer_load_dword v25, v24, {s(sDBG,4)}, 0 offen offset:128 sc1")
        a("s_waitcnt vmcnt(0)")
        a(f"v_cmp_ne_u32 vcc, s{t0}, v25")
        if DEVTO:
            a(f"s_add_u32 s{t1}, s{t1}, 1")
            a(f"s_cmp_gt_u32 s{t1}, 20000")
            a("s_cbranch_scc1 M_PAX")
        a("s_cbranch_vccz M_PAX")
        a(f"s_sleep {SLP}")
        a("s_branch M_PA")
        a.label("M_PAX")
        a("s_mov_b64 exec, -1")
        a.label("M_PAE")
    elif AF_=='ws': poll(CTR_A,PW,base=0)
    else: poll(CTR_A,PW)
    a("s_waitcnt lgkmcnt(0)")
    a("s_barrier")
    a.stamp(86,96)
    if WB=='late':
        a(f"s_cmp_lt_u32 s2, {PW}")
        a("s_cbranch_scc1 M_NWB")
        a(f"s_cmp_eq_u32 s{sFIRST}, 0")
        a("s_cbranch_scc1 M_NWB")
        publish(a,sWV,sDBG,CTR_T,NTW,24,sWS,t0,2048,wb=True)
        a.label("M_NWB")
    OFFV=0
    a(f"v_lshlrev_b32 v1, 2, v{GAM}")
    a(f"s_lshl_b32 s3, s{sBIN}, 8")
    a(f"s_add_u32 s3, s3, {WS_OFF}")
    a(f"buffer_load_dword v{OFFV}, v1, {s(sWS,4)}, s3 offen")
    SA=20; REM=21; RC=32; A4=72
    rc=lambda i: RC+4*i
    pm=lambda i: f"s[{sPEND+2*i}:{sPEND+2*i+1}]"
    a(f"v_add_u32 v17, s{sWIN}, v{N16}")
    a(f"s_mov_b32 s3, {RECW}")
    a(f"v_cmp_gt_u32 vcc, {PW}, v{GAM}")
    a("s_waitcnt vmcnt(0)")
    a.stamp(85,96)
    a(f"v_lshrrev_b32 v{REM}, 16, v{OFFV}")
    a(f"v_and_b32 v{SA}, 0xffff, v{OFFV}")
    a(f"v_add_u32 v{SA}, v{SA}, v17")
    a(f"v_cndmask_b32 v{REM}, 0, v{REM}, vcc")
    a(f"v_mul_u32_u24 v{SA}, 12, v{SA}")
    a(f"v_mad_u32_u24 v{SA}, v{GAM}, s3, v{SA}")
    a(f"v_sub_u32 v{REM}, v{REM}, v17")
    a(f"s_cmp_eq_u32 s{sNEW}, 0")
    a("s_cbranch_scc1 M_OLDWIN")
    for c in range(NCH):
        if 16*c<=64: a(f"v_cmp_lt_i32 {pm(c)}, {16*c}, v{REM}")
        else:
            a(f"v_cmp_lt_i32 vcc, {16*c}, v{REM}")
            a(f"s_mov_b64 {pm(c)}, vcc")
    a(f"v_cmp_lt_i32 vcc, {WIN}, v{REM}")
    a("s_cmp_lg_u64 vcc, 0")
    a(f"s_cselect_b32 s{sMORE}, 2, 0")
    a.label("M_OLDWIN")
    a(f"s_mov_b32 s3, {WS_REC}")
    def each_slot(body, tag):
        for i in range(NCH):
            L=a.newlabel(tag)
            a(f"s_mov_b64 exec, {pm(i)}")
            a(f"s_cbranch_execz {L}")
            body(i)
            a.label(L)
        a("s_mov_b64 exec, -1")
    each_slot(lambda i: a(f"buffer_load_dwordx3 {v(rc(i),3)}, v{SA}, {s(sWS,4)}, s3 offen offset:{192*i}"), "M_LD")
    poll(CTR_T,NTW,15,base=(2048 if AF_=='ws' else None))
    a(f"s_waitcnt vmcnt(0)")
    a.stamp(87,96)
    def rank(i):
        a(f"v_lshrrev_b32 v{A4+i}, 16, v{rc(i)+2}")
        a(f"v_min_u32 v{A4+i}, {(NB-1)*4}, v{A4+i}")
        a(f"v_and_b32 v{A4+i}, -4, v{A4+i}")
        a(f"ds_add_rtn_u32 v{rc(i)+3}, v{A4+i}, v16 offset:{CNTL}")
    each_slot(rank,"M_RK")
    for r in range(4):
        a(f"v_lshlrev_b32 v{WV+r}, 16, v{WRAW+r}")
        a(f"v_and_b32 v{WV+4+r}, 0xffff0000, v{WRAW+r}")
    for r in range(4):
        a(f"v_lshlrev_b32 v{24+r}, 16, v{WRAW+4+r}")
        a(f"v_and_b32 v{28+r}, 0xffff0000, v{WRAW+4+r}")
    for r in range(8): a(f"v_mul_f32 v{24+r}, 0x3e800000, v{24+r}")
    for k in range(4): a(f"v_cvt_pk_bf16_f32 v{WR+k}, v{24+2*k}, v{25+2*k}")
    for r in list(range(0,16))+list(range(20,32)): a(f"v_mov_b32 v{r}, 0")
    a("s_waitcnt lgkmcnt(0)")
    def place(i):
        a(f"v_cmp_gt_u32 vcc, {32*33}, v{rc(i)+3}")
        a(f"v_bfe_u32 v18, v{rc(i)+3}, 4, 5")
        a(f"v_mul_u32_u24 v19, 17, v{A4+i}")
        a(f"s_andn2_b64 {pm(i)}, exec, vcc")
        a(f"v_lshl_add_u32 v19, v18, 1, v19")
        a(f"v_lshlrev_b32 v18, 2, v19")
        a(f"s_mov_b64 exec, vcc")
        a(f"ds_write_b64 v18, {v(rc(i),2)} offset:{RECL}")
        a(f"ds_write_b16 v19, v{rc(i)+2} offset:{LAL}")
    each_slot(place,"M_PL")
    a("s_waitcnt lgkmcnt(0)")
    a("s_barrier")
    a.stamp(88,96)
    a(f"s_lshl_b32 s3, s{sWV}, 3")
    a(f"v_mov_b32 v{LWA}, s3")
    a(f"ds_read_b32 v{LWA}, v{LWA} offset:{CNTL}")
    a(f"s_mul_i32 s3, s{sWV}, {2*272}")
    a(f"v_add_u32 v{LWP}, s3, v{PSRC}")
    a(f"ds_read_u16 v{SRCW}, v{LWP} offset:{RECL+6}")
    for r in range(16,20): a(f"v_mov_b32 v{r}, 0")
    a("s_waitcnt lgkmcnt(0)")
    a(f"v_readfirstlane_b32 s{xCnt}, v{LWA}")
    a(f"v_lshlrev_b32 v{SRCW}, 8, v{SRCW}")
    for i in range(8):
        a(f"s_cmp_le_u32 s{xCnt}, {4*i*33}")
        a("s_cbranch_scc1 M_FG")
        ta=(LWA,LWP)[i&1]
        a(f"v_add_u32_dpp v{ta}, v{SRCW}, v{C16} row_newbcast:{i} row_mask:0xf bank_mask:0xf")
        if 'nog' not in EXP: a(f"buffer_load_dwordx4 {v(G+4*i,4)}, v{ta}, {s(sT,4)}, 0 offen")
    a.label("M_FG")
    a(f"s_cmp_ge_u32 s{sWV}, 4")
    a("s_cbranch_scc1 M_NOALLOC")
    a(f"v_lshlrev_b32 v82, 2, v{TID}")
    a(f"v_cmp_gt_u32 vcc, {NB}, v{TID}")
    a("s_mov_b64 exec, vcc")
    a(f"ds_read_b32 v84, v82 offset:{CNTL}")
    a(f"v_mov_b32 v85, {POOL}")
    a(f"v_mov_b32 v86, {POOLC}")
    a("v_mov_b32 v87, 1")
    a(f"s_sub_u32 s3, {N}, s{sN0}")
    a(f"v_cmp_gt_u32 vcc, s3, v{TID}")
    a(f"v_mov_b32 v88, {4<<8}")
    a(f"v_mov_b32 v118, {5<<8}")
    a(f"v_cndmask_b32 v88, v88, v118, vcc")
    a(f"v_or_b32 v88, v88, v{TID}")
    a("s_waitcnt lgkmcnt(0)")
    a(f"v_min_u32 v84, {64*33}, v84")
    a("v_mul_u32_u24 v84, 1986, v84")
    a("v_lshrrev_b32 v84, 16, v84")
    a("v_cmp_lt_u32 vcc, 32, v84")
    a("s_and_saveexec_b64 s[0:1], vcc")
    a("ds_add_rtn_u32 v85, v86, v87")
    a("s_mov_b64 exec, s[0:1]")
    a(f"s_mul_i32 s3, s{sQ}, {NQ}")
    a(f"v_subrev_u32 v118, s3, v{TID}")
    a("s_waitcnt lgkmcnt(0)")
    a(f"v_cmp_gt_u32 vcc, {POOL}, v85")
    a(f"v_add_u32 v85, {NB}, v85")
    a("v_min_u32 v86, 64, v84")
    a("v_lshl_or_b32 v86, v85, 7, v86")
    a("v_min_u32 v84, 32, v84")
    a("v_cndmask_b32 v84, v84, v86, vcc")
    a("v_lshl_or_b32 v84, v88, 16, v84")
    a(f"ds_write_b32 v82, v84 offset:{TTL}")
    a(f"v_cmp_gt_u32 vcc, {NQ}, v118")
    a(f"v_or_b32 v84, {1<<25}, v84")
    a("v_lshlrev_b32 v118, 3, v118")
    a("s_and_b64 exec, exec, vcc")
    a(f"ds_write_b32 v118, v84 offset:{TTL+8*NVU}")
    a("s_mov_b64 exec, -1")
    a("s_waitcnt lgkmcnt(0)")
    a.label("M_NOALLOC")
    a("s_barrier")
    a(f"s_lshl_b32 s3, s{sWV}, 3")
    a(f"v_mov_b32 v85, s3")
    a(f"ds_read_b64 v[86:87], v85 offset:{TTL}")
    a(f"s_movk_i32 s{t2}, 68")
    each_slot(lambda i: a(f"ds_read_b32 v{A4+i}, v{A4+i} offset:{TTL}"),"M_P1")
    a("s_waitcnt lgkmcnt(0)")
    def place2(i):
        a(f"v_and_b32 v84, 0x7f, v{A4+i}")
        a("v_mul_u32_u24 v84, 33, v84")
        a(f"v_cmp_lt_u32 vcc, v{rc(i)+3}, v84")
        a(f"v_subrev_u32 v82, {32*33}, v{rc(i)+3}")
        a(f"v_bfe_u32 v82, v82, 4, 5")
        a(f"v_bfe_u32 v84, v{A4+i}, 7, 9")
        a(f"s_andn2_b64 {pm(i)}, exec, vcc")
        a(f"v_mul_u32_u24 v84, s{t2}, v84")
        a(f"v_lshl_add_u32 v84, v82, 1, v84")
        a(f"v_lshlrev_b32 v82, 2, v84")
        a("s_mov_b64 exec, vcc")
        a(f"ds_write_b64 v82, {v(rc(i),2)} offset:{RECL}")
        a(f"ds_write_b16 v84, v{rc(i)+2} offset:{LAL}")
    each_slot(place2,"M_P2")
    a(f"v_readfirstlane_b32 s{sWA}, v86")
    a(f"v_readfirstlane_b32 s{sWB}, v87")
    a(f"s_or_b64 s[0:1], {pm(0)}, {pm(1)}")
    for i in range(2,NCH): a(f"s_or_b64 s[0:1], s[0:1], {pm(i)}")
    a("s_cselect_b32 s3, 1, 0")
    a(f"s_or_b32 s3, s3, s{sMORE}")
    a(f"v_mov_b32 v84, {FLAGL}")
    a("s_cbranch_scc0 M_NOFLAG")
    a("v_mov_b32 v82, s3")
    a("ds_or_b32 v84, v82")
    a.label("M_NOFLAG")
    a.stamp(92,96)
    a(f"s_waitcnt lgkmcnt(0)")
    a("s_barrier")
    a.stamp(89,96)
    a(f"ds_read_b32 v{LWA}, v84")
    for r in list(range(32,64))+list(range(A,A+8)): a(f"v_mov_b32 v{r}, 0")
    a(f"s_mov_b32 s{sP2}, 0")
    a(f"s_mov_b32 s{sNEED}, 0")
    a(f"s_mov_b32 s{sEND}, 0")
    a("s_waitcnt lgkmcnt(0)")
    a(f"v_readfirstlane_b32 s{sFLAG}, v{LWA}")
    a(f"s_xor_b32 s{sSLOW}, s{sFIRST}, 1")
    a(f"s_or_b32 s{sSLOW}, s{sSLOW}, s{sFLAG}")

    def next_desc():
        L2=a.newlabel("M_ND2"); LE=a.newlabel("M_NDE"); LC=a.newlabel("M_NDC")
        a(f"s_cmp_lg_u32 s{sP2}, 0")
        a(f"s_cbranch_scc1 {L2}")
        a(f"s_bfe_u32 s{nNode}, s{sWA}, 0x80010")
        a(f"s_mov_b32 s{nBlk}, s{nNode}")
        a(f"s_and_b32 s{nCnt}, s{sWA}, 0x7f")
        a(f"s_lshr_b32 s{nFl}, s{sWA}, 24")
        a(f"s_cmp_gt_u32 s{nCnt}, 32")
        a(f"s_cselect_b32 s{sP2}, s{sWA}, 0")
        a(f"s_cselect_b32 s{t0}, {1<<F_FIRST}, {(1<<F_FIRST)|(1<<F_LAST)}")
        a(f"s_or_b32 s{nFl}, s{nFl}, s{t0}")
        a(f"s_min_u32 s{nCnt}, s{nCnt}, 32")
        a(f"s_mov_b32 s{sWA}, s{sWB}")
        a(f"s_mov_b32 s{sWB}, 0")
        a(f"s_or_b32 s{t0}, s{sWA}, s{sEND}")
        a(f"s_cbranch_scc1 {LE}")
        a(f"s_mov_b32 s{sNEED}, 1")
        a(f"v_mov_b32 v{TA}, {CLAIML}")
        a(f"v_mov_b32 v{TA2}, 8")
        a("s_mov_b64 exec, 1")
        a(f"ds_add_rtn_u32 v{CLM}, v{TA}, v{TA2}")
        a("s_mov_b64 exec, -1")
        a(f"s_branch {LE}")
        a.label(L2)
        a(f"s_bfe_u32 s{nBlk}, s{sP2}, 0x90007")
        a(f"s_and_b32 s{nCnt}, s{sP2}, 0x7f")
        a(f"s_sub_u32 s{nCnt}, s{nCnt}, 32")
        a(f"s_lshr_b32 s{nFl}, s{sP2}, 24")
        a(f"s_or_b32 s{nFl}, s{nFl}, {1<<F_LAST}")
        a(f"s_mov_b32 s{sP2}, 0")
        a.label(LE)
    def claim_top():
        L=a.newlabel("M_CT")
        a(f"s_cmp_eq_u32 s{sNEED}, 0")
        a(f"s_cbranch_scc1 {L}")
        a("s_waitcnt lgkmcnt(0)")
        a("s_mov_b64 exec, 1")
        a(f"ds_read_b32 v{TA}, v{CLM} offset:{TTL+128}")
        a(f"ds_read_b32 v{TA2}, v{CLM} offset:{TTL+132}")
        a("s_mov_b64 exec, -1")
        a.label(L)
    def claim_mid():
        L=a.newlabel("M_CM")
        a(f"s_cmp_eq_u32 s{sNEED}, 0")
        a(f"s_cbranch_scc1 {L}")
        a(f"v_readfirstlane_b32 s{sWA}, v{TA}")
        a(f"v_readfirstlane_b32 s{sWB}, v{TA2}")
        a(f"s_mov_b32 s{sNEED}, 0")
        a(f"s_cmp_eq_u32 s{sWA}, 0")
        a(f"s_cselect_b32 s{sEND}, 1, 0")
        a.label(L)
    def raw_reads(full):
        a(f"s_mul_i32 s{t0}, s{nBlk}, 68")
        a(f"s_lshl_b32 s{t1}, s{t0}, 2")
        a(f"v_add_u32 v{TA}, s{t0}, v{PLA}")
        a(f"ds_read_b32 v{LWA}, v{TA} offset:{LAL}")
        a(f"v_add_u32 v{TA2}, s{t1}, v{PSRC}")
        a(f"ds_read_u16 v{SRCW}, v{TA2} offset:{RECL+6}")
        if full:
            a(f"v_add_u32 v{TA}, s{t0}, v{PLAP}")
            a(f"ds_read_b32 v{LWP}, v{TA} offset:{LAL}")
    def rotate():
        a(f"s_mov_b32 s{cCnt}, s{xCnt}"); a(f"s_mov_b64 s[{cNode}:{cFl}], s[{xNode}:{xFl}]")
        a(f"s_mov_b64 s[{xBlk}:{xCnt}], s[{nBlk}:{nCnt}]"); a(f"s_mov_b64 s[{xNode}:{xFl}], s[{nNode}:{nFl}]")
    def gathers():
        LE=a.newlabel("M_GE"); LS=a.newlabel("M_GS"); LB=a.newlabel("M_GB")
        def one(i):
            ta = TA if i%2==0 else TA2
            a(f"v_add_u32_dpp v{ta}, v{SRCW}, v{C16} row_newbcast:{i} row_mask:0xf bank_mask:0xf")
            if 'nog' not in EXP: a(f"buffer_load_dwordx4 {v(G+4*i,4)}, v{ta}, {s(sT,4)}, 0 offen")
        a(f"s_cmp_le_u32 s{xCnt}, 12")
        a(f"s_cbranch_scc1 {LS}")
        for i in range(4): one(i)
        for i in range(4,8):
            a(f"s_cmp_le_u32 s{xCnt}, {4*i}")
            a(f"s_cbranch_scc1 {LE}")
            one(i)
        a.label(LE)
        def cold():
            a.label(LS)
            for i in range(3):
                a(f"s_cmp_le_u32 s{xCnt}, {4*i}")
                a(f"s_cbranch_scc1 {LE}")
                one(i)
            a(f"s_branch {LE}")
        return cold
    def gat(i):
        L=a.newlabel("M_G1")
        ta = TA if i%2==0 else TA2
        a(f"s_cmp_le_u32 s{xCnt}, {4*i}")
        a(f"s_cbranch_scc1 {L}")
        a(f"v_add_u32_dpp v{ta}, v{SRCW}, v{C16} row_newbcast:{i} row_mask:0xf bank_mask:0xf")
        if 'nog' not in EXP: a(f"buffer_load_dwordx4 {v(G+4*i,4)}, v{ta}, {s(sT,4)}, 0 offen")
        a.label(L)
    def node_off(dst, node, sub=0):
        a(f"s_add_u32 s{dst}, s{sN0}, s{node}")
        if sub: a(f"s_sub_u32 s{dst}, s{dst}, {sub}")
        a(f"s_min_u32 s{dst}, s{dst}, {N-2}")
        a(f"s_lshl_b32 s{dst}, s{dst}, 10")
    def sv_loadV(node):
        node_off(t2,node)
        if 'wide' in EXP:
            a(f"buffer_load_dwordx2 {v(SVD,2)}, v{VO1}, {s(sSV,4)}, s{t2} offen"); return
        a(f"buffer_load_dword v{SVD}, v{VO1}, {s(sSV,4)}, s{t2} offen")
        a(f"buffer_load_short_d16_hi v{SVS}, v{VO2}, {s(sSV,4)}, s{t2} offen")
    def carry(Zs, kind, sub, Lback, tail):
        LC=a.newlabel("M_NOC")
        a(f"v_mbcnt_lo_u32_b32 v{TA}, -1, 0")
        a(f"v_mbcnt_hi_u32_b32 v{TA}, -1, v{TA}")
        a(f"v_lshlrev_b32 v{TA}, 2, v{TA}")
        a(f"s_mul_i32 s{t2}, s2, {CARRY_WG}")
        a(f"s_lshl_b32 s{t3}, s{cNode}, 9")
        a(f"s_add_u32 s{t2}, s{t2}, s{t3}")
        a(f"s_add_u32 s{t2}, s{t2}, {WS_CARRY+kind*NB*512-sub*512}")
        a(f"s_cmp_lg_u32 s{sFIRST}, 0")
        a(f"s_cbranch_scc1 {LC}")
        for i,z in enumerate(Zs):
            a(f"buffer_load_dword v{TA2}, v{TA}, {s(sWS,4)}, s{t2} offen offset:{256*i} sc1")
            a("s_waitcnt vmcnt(0)")
            a(f"v_add_f32 v{z}, v{z}, v{TA2}")
        a.label(LC)
        a(f"s_cmp_eq_u32 s{sFLAG}, 0")
        a(f"s_cbranch_scc1 {Lback}")
        for i,z in enumerate(Zs):
            a(f"buffer_store_dword v{z}, v{TA}, {s(sWS,4)}, s{t2} offen offset:{256*i} sc1")
        tail()

    PROF = a.stamps and 'prof' in EXP
    def tick(acc):
        if not PROF: return
        a("s_memtime s[96:97]"); a("s_waitcnt lgkmcnt(0)")
        a("s_sub_u32 s97, s96, s56"); a("s_mov_b32 s56, s96")
        a(f"s_add_u32 s{acc}, s{acc}, s97")
    if PROF:
        for r in (57,58,59,99,100,101): a(f"s_mov_b32 s{r}, 0")
        a("s_memtime s[96:97]"); a("s_waitcnt lgkmcnt(0)"); a("s_mov_b32 s56, s96")
    next_desc()
    raw_reads(True)
    sv_loadV(nNode)
    a(f"s_mov_b32 s{xCnt}, 0"); a(f"s_mov_b32 s{xNode}, 0"); a(f"s_mov_b32 s{xFl}, {(1<<F_FIRST)|(1<<F_LAST)}")
    rotate()
    a.stamp(90,96)
    if a.stamps:
        a("s_memtime s[96:97]"); a("s_waitcnt lgkmcnt(0)"); a("s_mov_b32 s95, s96")
    a("s_waitcnt lgkmcnt(0)")
    a("s_branch VB_POST")
    colds=[]
    def vexit(L):
        a(f"s_and_b32 s{t0}, s{cFl}, {(1<<F_S)|(1<<F_EX)}")
        a(f"s_cmp_eq_u32 s{t0}, {1<<F_EX}")
        a(f"s_cbranch_scc1 {L}")
        a("s_branch S_START")
    for cp,X,PT in (("A",XA,(XB+3,XB+7)),("B",XB,(XA+3,XA+7))):
        if cp=="A":
            a.label("VA_TOP0")
            a("s_waitcnt vmcnt(0)")
            a.label("VA_TOP")
            claim_top()
            tick(59)
            a(f"s_waitcnt vmcnt({2 if 'wide' in EXP else 4}) lgkmcnt(0)")
            tick(57)
        else:
            a.label("VB_TOP0")
            claim_top()
            tick(59)
            a("s_waitcnt vmcnt(0)")
            tick(58)
            a.label("VB_MID")
            a("s_waitcnt lgkmcnt(0)")
        a(f"v_lshlrev_b32 v{SRCW}, 8, v{SRCW}")
        claim_mid()
        if cp=="B":
            a(f"s_bitcmp1_b32 s{xFl}, {F_S}")
            a(f"s_cselect_b32 s{sT}, s{sSB}, s{sT}")
            a(f"s_cselect_b32 s{sT+1}, s{sSB+1}, s{sT+1}")
        for p in range(4):
            LP=a.newlabel("V_NP")
            if p>0:
                a(f"s_cmp_le_u32 s{cCnt}, {8*p}")
                a(f"s_cbranch_scc1 {LP}")
            Ga,Gb=G+8*p,G+8*p+4
            h=p>>1; r=(2*p)&3
            d0=DW+(2*h)*4+r; d1=DW+(2*h+1)*4+r
            pr=[]
            for j in range(3):
                pr.append(f"v_perm_b32 v{F+(2*j)*4+p}, v{Gb+j}, v{Ga+j}, s{sLO}")
                pr.append(f"v_perm_b32 v{F+(2*j+1)*4+p}, v{Gb+j}, v{Ga+j}, s{sHI}")
            a(f"v_mul_f32 v{d1}, v{d1}, v{Ga+3}"); a(pr[0])
            a(f"v_mul_f32 v{d1+1}, v{d1+1}, v{Gb+3}"); a(pr[1])
            a(f"v_lshlrev_b32 v{Ga+3}, 16, v{Ga+3}")
            a(f"v_lshlrev_b32 v{Gb+3}, 16, v{Gb+3}")
            a(pr[2])
            if p>0 and GI==2: gat(2*p-1)
            a(f"v_mul_f32 v{d0}, v{d0}, v{Ga+3}"); a(pr[3])
            a(f"v_mul_f32 v{d0+1}, v{d0+1}, v{Gb+3}"); a(pr[4])
            a(f"v_cvt_pk_bf16_f32 v{Y+4+p}, v{d1}, v{d1+1}")
            a(pr[5])
            a(f"v_cvt_pk_bf16_f32 v{Y+p}, v{d0}, v{d0+1}")
            if GI==2 and p>0:
                LQ=a.newlabel("V_NQ")
                a(f"s_branch {LQ}")
                a.label(LP)
                gat(2*p-1)
                a.label(LQ)
            else: a.label(LP)
            gat(2*p)
            if GI==1 or p==3: gat(2*p+1)
        if cp=="B": a.label("VB_POST")
        tick(99)
        a(f"s_bitcmp1_b32 s{cFl}, {F_FIRST}")
        a(f"s_cbranch_scc0 V{cp}_ACC")
        for t in range(2): a(f"v_mfma_f32_16x16x32_bf16 {v(X+4*t,4)}, {v(R,4)}, {v(Y+4*t,4)}, 0")
        a.label(f"V{cp}_ACCB")
        def acc(cp=cp,X=X):
            a.label(f"V{cp}_ACC")
            for t in range(2): a(f"v_mfma_f32_16x16x32_bf16 {v(X+4*t,4)}, {v(R,4)}, {v(Y+4*t,4)}, {v(X+4*t,4)}")
            a(f"s_branch V{cp}_ACCB")
        colds.append(acc)
        def MD(k): a(f"v_mfma_f32_16x16x32_bf16 {v(DW+4*(k&3),4)}, {v(A,4)}, {v(F+4*k,4)}, 0")
        def post(k):
            j,t=k>>1,k&1
            for r in range(4): a(f"v_fmac_f32 v{X+4*t+j}, v{DW+4*(k&3)+r}, v{WV+4*t+r}")
        MD(0)
        a(f"v_add_u32_sdwa v{PT[0]}, v{LWP}, v{C8P} {SD} src0_sel:WORD_0 src1_sel:DWORD")
        MD(1)
        a(f"v_add_u32_sdwa v{PT[1]}, v{LWP}, v{C8P} {SD} src0_sel:WORD_1 src1_sel:DWORD")
        MD(2)
        a(f"ds_read_b64 {v(R,2)}, v{PT[0]}")
        a(f"ds_read_b64 {v(R+2,2)}, v{PT[1]}")
        MD(3)
        a(f"v_add_u32_sdwa v{PT[0]}, v{LWA}, v{C8} {SD} src0_sel:WORD_0 src1_sel:DWORD")
        post(0); MD(4)
        a(f"v_add_u32_sdwa v{PT[1]}, v{LWA}, v{C8} {SD} src0_sel:WORD_1 src1_sel:DWORD")
        post(1); MD(5)
        a(f"ds_read_b64_tr_b16 {v(A,2)}, v{PT[0]}")
        a(f"ds_read_b64_tr_b16 {v(A+2,2)}, v{PT[1]}")
        a(f"s_mul_i32 s{t1}, s{xBlk}, 272")
        post(2); post(3)
        a("s_waitcnt lgkmcnt(2)")
        def MW(h,t): a(f"v_mfma_f32_16x16x16_bf16 {v(DW+(2*h+t)*4,4)}, {v(R+2*h,2)}, {v(WR+2*t,2)}, 0")
        MW(1,0); MW(1,1)
        a(f"v_lshl_add_u32 v{PT[0]}, v{PLA}, 2, s{t1}")
        post(4); MW(0,0); post(5); MW(0,1)
        a(f"ds_read_b64_tr_b16 {v(R,2)}, v{PT[0]} offset:{RECL}")
        a(f"ds_read_b64_tr_b16 {v(R+2,2)}, v{PT[0]} offset:{RECL+8}")
        tick(100)
        next_desc()
        raw_reads(True)
        if PROF: a("s_add_u32 s101, s101, 1")
        a(f"s_bitcmp1_b32 s{cFl}, {F_LAST}")
        if cp=="A":
            rotate()
            a("s_cbranch_scc0 VA_TOP0")
        else:
            a("s_cbranch_scc1 V_EPI")
            rotate()
            a("s_branch VB_TOP0")
    a.label("V_EPI")
    a(f"s_bitcmp1_b32 s{cFl}, {F_VALID}")
    a("s_cbranch_scc0 V_SKIP")
    for t in range(2):
        for j in range(3): a(f"v_permlane32_swap_b32 v{XA+4*t+j}, v{XB+4*t+j}")
    for j in range(3):
        for t in range(2): a(f"v_add_f32 v{XA+4*t+j}, v{XA+4*t+j}, v{XB+4*t+j}")
    a(f"v_permlane16_swap_b32 v{XA}, v{XA+1}")
    a(f"v_permlane16_swap_b32 v{XA+4}, v{XA+5}")
    a(f"v_permlane16_swap_b32 v{XA+2}, v{XA+6}")
    Z0,Z1,Z2=XA,XA+4,XA+2
    a(f"v_add_f32 v{Z0}, v{XA}, v{XA+1}")
    a(f"v_add_f32 v{Z1}, v{XA+4}, v{XA+5}")
    a(f"v_add_f32 v{Z2}, v{XA+2}, v{XA+6}")
    a(f"s_cmp_lg_u32 s{sSLOW}, 0")
    a("s_cbranch_scc1 V_SLOW")
    a.label("V_BACK")
    a(f"v_lshlrev_b32 v{XB}, 16, v{SVD}")
    a(f"v_and_b32 v{XB+1}, 0xffff0000, v{SVD}")
    a(f"v_add_f32 v{Z2}, v{Z2}, v{SVS}")
    a(f"v_add_f32 v{Z0}, v{Z0}, v{XB}")
    a(f"v_add_f32 v{Z1}, v{Z1}, v{XB+1}")
    node_off(t2,cNode,1)
    a(f"v_cvt_pk_bf16_f32 v{Z2}, v{Z2}, v{Z2}")
    a(f"v_cvt_pk_bf16_f32 v{Z0}, v{Z0}, v{Z1}")
    if 'wide' in EXP: a(f"buffer_store_dwordx2 {v(Z0,2)}, v{VO1}, {s(sOUT,4)}, s{t2} offen")
    else:
        a(f"buffer_store_short v{Z2}, v{VO2}, {s(sOUT,4)}, s{t2} offen")
        a(f"buffer_store_dword v{Z0}, v{VO1}, {s(sOUT,4)}, s{t2} offen")
    sv_loadV(xNode)
    rotate()
    vexit("VA_TOP")
    a.label("V_SLOW")
    a_skip=lambda: None
    carry([Z0,Z1,Z2],0,1,"V_BACK",a_skip)
    a.label("V_SKIP")
    rotate()
    vexit("VA_TOP0")
    for c in colds: c()
    colds=[]
    FS=32; WS_=64
    WSR=[64+i for i in range(16)]+[80,81,82,84,85,86,88,89,90,92,93,94]+[96,97,98,99]
    CAR=[100,101,102,103,104,105,106,107]
    def sv_loadS(node):
        a(f"s_add_u32 s{t2}, s{sN0}, s{node}")
        a(f"s_min_u32 s{t2}, s{t2}, {N-1}")
        a(f"s_lshl_b32 s{t2}, s{t2}, 10")
        a(f"buffer_load_dword v{SVD}, v{VO1}, {s(sSV,4)}, s{t2} offen")
    a.label("S_START")
    a.stamp(91,96)
    a(f"s_bitcmp1_b32 s{cFl}, {F_EX}")
    a("s_cbranch_scc0 M_DONE")
    a(f"v_mbcnt_lo_u32_b32 v{VO2}, -1, 0")
    a(f"v_mbcnt_hi_u32_b32 v{VO2}, -1, v{VO2}")
    a(f"v_lshrrev_b32 v{VO2}, 4, v{VO2}")
    a(f"v_lshl_add_u32 v{VO1}, v{VO2}, 2, v{C16}")
    if 'lin' in EXP:
        a(f"v_lshrrev_b32 v{VO1}, 2, v{C16}")
        a(f"v_lshl_add_u32 v{VO1}, v{VO2}, 6, v{VO1}")
    a(f"v_mul_u32_u24 v{VO2}, {4*768}, v{VO2}")
    a(f"v_add_u32 v{VO2}, v{VO2}, v{C16}")
    for r in range(4):
        a(f"buffer_load_dwordx4 {v(FS+4*r,4)}, v{VO2}, {s(sWR,4)}, 0 offen offset:{768*r}")
    sv_loadS(cNode)
    a("s_waitcnt vmcnt(1)")
    for r in range(4):
        for d in range(4):
            a(f"v_lshlrev_b32 v{WSR[(2*d)*4+r]}, 16, v{FS+4*r+d}")
            a(f"v_and_b32 v{WSR[(2*d+1)*4+r]}, 0xffff0000, v{FS+4*r+d}")
    a.label("S_TOP0")
    a("s_waitcnt vmcnt(0)")
    a.label("S_TOP")
    claim_top()
    a("s_waitcnt vmcnt(1) lgkmcnt(0)")
    a(f"v_lshlrev_b32 v{SRCW}, 8, v{SRCW}")
    a(f"v_mov_b32 v{SVS}, v{SVD}")
    claim_mid()
    L=a.newlabel("S_NSV")
    a(f"s_bitcmp1_b32 s{xFl}, {F_FIRST}")
    a(f"s_cbranch_scc0 {L}")
    sv_loadS(xNode)
    a.label(L)
    for p in range(4):
        Ga,Gb=G+8*p,G+8*p+4
        for d in range(4):
            a(f"v_perm_b32 v{FS+(2*d)*4+p}, v{Gb+d}, v{Ga+d}, s{sLO}")
            a(f"v_perm_b32 v{FS+(2*d+1)*4+p}, v{Gb+d}, v{Ga+d}, s{sHI}")
        gat(2*p); gat(2*p+1)
    for k in range(8):
        a(f"v_mfma_f32_16x16x32_bf16 {v(FS+4*k,4)}, {v(A,4)}, {v(FS+4*k,4)}, 0")
        if k==2: a(f"v_add_u32_sdwa v{TA}, v{LWA}, v{C8} {SD} src0_sel:WORD_0 src1_sel:DWORD")
        if k==4: a(f"v_add_u32_sdwa v{TA2}, v{LWA}, v{C8} {SD} src0_sel:WORD_1 src1_sel:DWORD")
    a(f"ds_read_b64_tr_b16 {v(A,2)}, v{TA}")
    a(f"ds_read_b64_tr_b16 {v(A+2,2)}, v{TA2}")
    next_desc()
    raw_reads(False)
    for k in range(8):
        a(f"v_mul_f32 v{FS+4*k}, v{FS+4*k}, v{WSR[4*k]}")
        for r in range(1,4): a(f"v_fmac_f32 v{FS+4*k}, v{FS+4*k+r}, v{WSR[4*k+r]}")
    a(f"s_bitcmp1_b32 s{cFl}, {F_FIRST}")
    a("s_cbranch_scc1 S_NOCAR")
    for k in range(8): a(f"v_add_f32 v{FS+4*k}, v{FS+4*k}, v{CAR[k]}")
    a.label("S_NOCAR")
    def sexit(L):
        a(f"s_bitcmp1_b32 s{cFl}, {F_EX}")
        a(f"s_cbranch_scc1 {L}")
        a("s_branch M_DONE")
    a(f"s_and_b32 s{t0}, s{cFl}, {(1<<F_LAST)|(1<<F_VALID)}")
    a(f"s_cmp_eq_u32 s{t0}, {(1<<F_LAST)|(1<<F_VALID)}")
    a("s_cbranch_scc1 S_EPI")
    for k in range(8): a(f"v_mov_b32 v{CAR[k]}, v{FS+4*k}")
    a.label("S_SKIP")
    rotate()
    sexit("S_TOP0")
    a.label("S_EPI")
    ac=lambda k: FS+4*k
    for k in range(4): a(f"v_permlane32_swap_b32 v{ac(k)}, v{ac(k+4)}")
    for k in range(4): a(f"v_add_f32 v{ac(k)}, v{ac(k)}, v{ac(k+4)}")
    a("s_nop 0")
    a(f"v_permlane16_swap_b32 v{ac(0)}, v{ac(2)}")
    a(f"v_permlane16_swap_b32 v{ac(1)}, v{ac(3)}")
    a(f"v_add_f32 v{ac(0)}, v{ac(0)}, v{ac(2)}")
    a(f"v_add_f32 v{ac(1)}, v{ac(1)}, v{ac(3)}")
    a(f"s_cmp_lg_u32 s{sSLOW}, 0")
    a("s_cbranch_scc1 S_SLOW")
    a.label("S_BACK")
    a(f"v_lshlrev_b32 v{ac(2)}, 16, v{SVS}")
    a(f"v_and_b32 v{ac(3)}, 0xffff0000, v{SVS}")
    a(f"v_add_f32 v{ac(0)}, v{ac(0)}, v{ac(2)}")
    a(f"v_add_f32 v{ac(1)}, v{ac(1)}, v{ac(3)}")
    a(f"s_add_u32 s{t2}, s{sN0}, s{cNode}")
    a(f"s_lshl_b32 s{t2}, s{t2}, 10")
    a(f"v_cvt_pk_bf16_f32 v{ac(0)}, v{ac(0)}, v{ac(1)}")
    a(f"buffer_store_dword v{ac(0)}, v{VO1}, {s(sOUT,4)}, s{t2} offen")
    rotate()
    sexit("S_TOP")
    a.label("S_SLOW")
    carry([ac(0),ac(1)],1,0,"S_BACK",lambda: a("s_branch S_SKIP"))
    for c in colds: c()
    a.label("M_DONE")
    if a.stamps:
        a.stamp(93,96)
        a("s_memtime s[96:97]"); a("s_waitcnt lgkmcnt(0)"); a("s_mov_b32 s98, s96")
        a("s_waitcnt vmcnt(0)")
        a.stamp(94,96)
        a(f"s_lshl_b32 s3, s2, 4"); a(f"s_add_u32 s3, s3, s{sWV}")
        a.dump_stamps([84,57,58,59,99,100,90,91,101,93,94,95,98] if PROF else [84,86,85,87,88,89,90,91,92,93,94,95,98],sWS,WS_CARRY,3,0,3)
        a("s_mov_b64 exec, -1")
    a(f"s_cmp_eq_u32 s{sFLAG}, 0")
    a("s_cbranch_scc1 M_END")
    a("s_waitcnt vmcnt(0) lgkmcnt(0)")
    a("s_barrier")
    a(f"s_mov_b32 s{sFIRST}, 0")
    a(f"s_bitcmp1_b32 s{sFLAG}, 0")
    a(f"s_cselect_b32 s{sNEW}, 0, 1")
    a(f"s_cselect_b32 s3, 0, {WIN}")
    a(f"s_add_u32 s{sWIN}, s{sWIN}, s3")
    a("s_branch M_ROUND")
    a.label("M_END")
    a("s_endpgm")
```

```python
from asmlib import *
from consts import *
from k1 import srd, COMP, PM, publish, AF_, WB, ALUT
import os
EXP=os.environ.get('EXP','')
SLP=int(os.environ.get('SLP','1'))
DEVTO=bool(os.environ.get('DEVTO'))
GI=int(os.environ.get('GI','1'))

CNTL=0; CLAIML=784; POOLC=788; FLAGL=792; TTL=800
NVU=NB//2; NU=NVU+NQ
LAL=2368; NBK=285; POOL=NBK-NB; RECL=LAL+(NBK*68+15)//16*16; LUTL=163840-LUT_BYTES; K2_LDS=163840
assert TTL+8*(NU+24)<=LAL and RECL+NBK*272<=LUTL and RECL%16==0
NCH=10; WIN=16*NCH
CARRY_WG=392*512
F_VALID,F_S,F_EX,F_FIRST,F_LAST=0,1,2,3,4
SD="dst_sel:DWORD dst_unused:UNUSED_PAD"

def gen_k2(a):
    t0,t1,t2,t3=4,5,6,7
    sT,sSV,sOUT,sWS,sWR=8,12,16,20,24
    sSB,sVB=28,30
    sWV,sQ,sBIN,sN0,sWIN,sNEW,sFIRST,sFLAG,sMORE,sLO,sHI=range(32,43)
    cCnt,cNode,cFl=43,44,45
    xBlk,xCnt,xNode,xFl=46,47,48,49
    nBlk,nCnt,nNode,nFl=50,51,52,53
    sP2,sSLOW=54,55
    sPEND=56
    sWA,sWB,sNEED,sEND=76,77,78,79
    G=0; F=32; Y=56; DW=64; XA=80; XB=88; WV=96; WR=104; A=108; R=112; LWA=116; LWP=117; SVD=118; SVS=119
    PLA,PLAP,PSRC,C8,C8P,C16,VO1,VO2=range(120,128)
    SRCW=XA+3; CLM=XA+7; TA=XB+3; TA2=XB+7

    a.label("M_ENTRY")
    if a.stamps: a("s_mov_b32 s99, s72")
    a.stamp(84,96)
    a("s_load_dwordx2 s[4:5], s[0:1], 0")
    a("s_load_dwordx4 s[44:47], s[0:1], 56")
    a("s_load_dwordx2 s[6:7], s[0:1], 80")
    a("s_load_dwordx2 s[48:49], s[0:1], 72")
    a(f"s_mov_b32 s{sWV}, s3")
    a("s_and_b32 s3, s2, 7")
    a(f"s_and_b32 s{sQ}, s3, 3")
    a("s_lshr_b32 s3, s3, 2")
    a("s_lshl_b32 s3, s3, 5")
    a(f"s_lshr_b32 s{sBIN}, s2, 3")
    a(f"s_add_u32 s{sBIN}, s{sBIN}, s3")
    a(f"s_mul_i32 s{sN0}, s{sBIN}, {NB}")
    a(f"s_mov_b32 s{sWIN}, 0")
    a(f"s_mov_b32 s{sNEW}, 1")
    a(f"s_mov_b32 s{sFIRST}, 1")
    a(f"s_mov_b32 s{sLO}, 0x05040100")
    a(f"s_mov_b32 s{sHI}, 0x07060302")
    a("s_waitcnt lgkmcnt(0)")
    srd(a,sWS,6,WS_CARRY+256*CARRY_WG)
    sDBG=80
    srd(a,sDBG,48,256)
    def poll(ctr, target, wave=0, vt=25, base=None):
        L=a.newlabel("M_POLL"); LE=a.newlabel("M_POLLE")
        a(f"s_cmp_lg_u32 s{sWV}, {wave}")
        a(f"s_cbranch_scc1 {LE}")
        if DEVTO: a(f"s_mov_b32 s{t1}, 0")
        a("s_mov_b64 exec, 1")
        if base is not None:
            a(f"s_and_b32 s{t2}, s2, 7")
            a(f"s_lshl_b32 s{t2}, s{t2}, 8")
            a(f"s_add_u32 s{t2}, s{t2}, {WS_FLG+base}")
        a.label(L)
        if base is None: a(f"buffer_load_dword v{vt}, off, {s(sDBG,4)}, 0 offset:{128+ctr} sc1")
        else: a(f"buffer_load_dword v{vt}, off, {s(sWS,4)}, s{t2} sc1")
        a("s_waitcnt vmcnt(0)")
        a(f"v_readfirstlane_b32 s{t0}, v{vt}")
        if DEVTO:
            a(f"s_add_u32 s{t1}, s{t1}, 1")
            a(f"s_cmp_gt_u32 s{t1}, 20000")
            a(f"s_cselect_b32 s{t0}, {target}, s{t0}")
        LX=a.newlabel("M_POLLX")
        a(f"s_cmp_eq_u32 s{t0}, {target}")
        a(f"s_cbranch_scc1 {LX}")
        a(f"s_sleep {SLP}")
        a(f"s_branch {L}")
        a.label(LX)
        a("s_mov_b64 exec, -1")
        a.label(LE)
    srd(a,sSV,4,N*1024); srd(a,sOUT,46,N*1024); srd(a,sWR,44,16*768)
    a(f"s_mul_i32 s3, s{sQ}, {TSZ}")
    a(f"s_add_u32 s{sVB}, s6, s3")
    a(f"s_addc_u32 s{sVB+1}, s7, 0")
    a(f"s_and_b32 s{sVB+1}, s{sVB+1}, 0xffff")
    a(f"s_add_u32 s{sSB}, s6, {WS_TS}")
    a(f"s_addc_u32 s{sSB+1}, s7, 0")
    a(f"s_and_b32 s{sSB+1}, s{sSB+1}, 0xffff")
    a(f"s_mov_b32 s{sT+2}, {TSZ}")
    a(f"s_mov_b32 s{sT+3}, 0x00020000")
    T16=91
    a(f"v_lshlrev_b32 v{T16}, 4, v0")
    poll(CTR_L,NLW)
    a("s_waitcnt vmcnt(0)")
    a("s_barrier")
    a(f"s_lshl_b32 s{t0}, s{sWV}, 10")
    a(f"s_add_u32 s{t0}, s{t0}, {LUTL}")
    for it in range(4):
        a(f"s_mov_b32 s3, {WS_LUT+it*16384}")
        if it==3:
            a(f"s_cmp_eq_u32 s{sWV}, 15")
            a(f"s_cselect_b32 s{t1}, 1024, 0")
            a(f"s_sub_u32 s{t0}, s{t0}, s{t1}")
            a(f"s_sub_u32 s3, s3, s{t1}")
        a(f"s_add_u32 m0, s{t0}, {it*16384}")
        a("s_nop 0")
        a(f"buffer_load_dwordx4 v{T16}, {s(sWS,4)}, s3 offen lds")
    a(f"s_cmp_lt_u32 s2, {PW}")
    a("s_cbranch_scc1 M_ROUND")
    if WB!='late': publish(a,sWV,sDBG,CTR_T,NTW,24,sWS,t0,2048,wb=bool(WB))
    a.label("M_ROUND")
    a(f"s_mov_b32 s{sT}, s{sVB}")
    a(f"s_mov_b32 s{sT+1}, s{sVB+1}")
    TID=95; LANE=94; N16=93; GAM=92; T16=91; PAIR=90; GG=89
    a(f"v_mbcnt_lo_u32_b32 v{LANE}, -1, 0")
    a(f"v_mbcnt_hi_u32_b32 v{LANE}, -1, v{LANE}")
    a(f"s_lshl_b32 s3, s{sWV}, 6")
    a(f"v_add_u32 v{TID}, s3, v{LANE}")
    a(f"v_lshrrev_b32 v{GAM}, 4, v{TID}")
    a(f"v_and_b32 v{N16}, 15, v{LANE}")
    a(f"v_lshlrev_b32 v{T16}, 4, v{TID}")
    WRAW=108
    a(f"v_lshrrev_b32 v{GG}, 4, v{LANE}")
    a(f"v_mul_u32_u24 v5, {4*768}, v{GG}")
    a(f"v_and_b32 v6, 3, v{N16}")
    a(f"v_lshrrev_b32 v7, 2, v{N16}")
    a(f"v_lshl_add_u32 v{PAIR}, v6, 2, v7")
    a(f"v_lshl_add_u32 v5, v{PAIR}, 2, v5")
    a(f"s_lshl_b32 s3, s{sQ}, 6")
    for r in range(4):
        a(f"buffer_load_dword v{WRAW+r}, v5, {s(sWR,4)}, s3 offen offset:{256+768*r}")
        a(f"buffer_load_dword v{WRAW+4+r}, v5, {s(sWR,4)}, s3 offen offset:{512+768*r}")
    a("v_mov_b32 v8, 0"); a("v_mov_b32 v9, 0xffff0000"); a("v_mov_b32 v10, 0"); a("v_mov_b32 v11, 0xffff0000")
    a("v_mov_b32 v12, 0"); a("v_mov_b32 v13, 0"); a("v_mov_b32 v14, 0"); a("v_mov_b32 v15, 0")
    a(f"ds_write_b128 v{T16}, v[12:15]")
    a(f"v_add_u32 v16, {RECL}, v{T16}")
    for it in range(4):
        a(f"ds_write_b128 v16, v[8:11] offset:{it*16384}")
    a(f"v_add_u32 v17, {RECL+65536}, v{T16}")
    a(f"v_cmp_gt_u32 vcc, {(LUTL-RECL-65536)//16}, v{TID}")
    a("s_mov_b64 exec, vcc")
    a("ds_write_b128 v17, v[8:11]")
    a(f"v_cmp_gt_u32 vcc, {(RECL-16384)//16}, v{TID}")
    a("s_mov_b64 exec, vcc")
    a(f"ds_write_b128 v{T16}, v[12:15] offset:16384")
    a("s_mov_b64 exec, -1")
    a(f"v_bfe_u32 v22, v{LANE}, 2, 2")
    a(f"v_lshlrev_b32 v{PLA}, 4, v22")
    a(f"v_lshl_add_u32 v{PLA}, v{GG}, 2, v{PLA}")
    a(f"v_and_b32 v23, 3, v{LANE}")
    a(f"v_lshlrev_b32 v{C8}, 3, v23")
    a(f"v_add_u32 v{C8}, {LUTL}, v{C8}")
    a(f"v_lshlrev_b32 v{PLAP}, 2, v{PAIR}")
    a(f"v_lshlrev_b32 v{PSRC}, 6, v23")
    a(f"v_lshl_add_u32 v{PSRC}, v{GG}, 4, v{PSRC}")
    a(f"v_and_b32 v23, 4, v{LANE}")
    a(f"v_lshl_add_u32 v{PSRC}, v23, 1, v{PSRC}")
    a(f"v_lshlrev_b32 v{C8P}, 3, v{GG}")
    a(f"v_add_u32 v{C8P}, {LUTL}, v{C8P}")
    a(f"v_lshlrev_b32 v{C16}, 4, v{N16}")
    a(f"v_lshrrev_b32 v22, 1, v{GG}")
    a(f"v_and_b32 v23, 1, v{GG}")
    a(f"v_lshlrev_b32 v{VO1}, 10, v22")
    a(f"v_lshl_add_u32 v{VO1}, v{N16 if 'lin' in EXP else PAIR}, 2, v{VO1}")
    a(f"s_lshl_b32 s3, s{sQ}, 6")
    a(f"s_add_u32 s3, s3, 256")
    a(f"v_add_u32 v{VO1}, s3, v{VO1}")
    a(f"v_lshl_add_u32 v{VO2}, v23, 1, v{VO1}")
    a(f"v_add_u32 v{VO2}, 512, v{VO2}")
    a(f"v_lshl_add_u32 v{VO1}, v23, 8, v{VO1}")
    a(f"v_mov_b32 v{SVS}, 0")
    if 'wide' in EXP:
        a(f"v_lshrrev_b32 v22, 3, v{LANE}")
        a(f"v_cmp_lt_u32 vcc, 2, v22")
        a(f"v_add_u32 v23, 1, v22")
        a("s_nop 0")
        a(f"v_cndmask_b32 v22, v22, v23, vcc")
        a(f"v_lshlrev_b32 v{VO1}, 8, v22")
        a(f"v_and_b32 v23, 7, v{LANE}")
        a(f"v_lshl_add_u32 v{VO1}, v23, 3, v{VO1}")
        a(f"v_add_u32 v{VO1}, s3, v{VO1}")
        a(f"v_cmp_gt_u32 vcc, 48, v{LANE}")
        a(f"v_mov_b32 v23, {BIG}")
        a("s_nop 0")
        a(f"v_cndmask_b32 v{VO1}, v23, v{VO1}, vcc")
    a("v_mov_b32 v16, 33")
    if AF_=='byte':
        assert PW%4==0
        a(f"s_cmp_lg_u32 s{sWV}, 0")
        a("s_cbranch_scc1 M_PAE")
        a(f"v_lshlrev_b32 v24, 2, v{LANE}")
        if DEVTO: a(f"s_mov_b32 s{t1}, 0")
        a(f"s_mov_b32 s{t0}, 0x01010101")
        a(f"s_mov_b64 exec, {(1<<(PW//4))-1}")
        a.label("M_PA")
        a(f"buffer_load_dword v25, v24, {s(sDBG,4)}, 0 offen offset:128 sc1")
        a("s_waitcnt vmcnt(0)")
        a(f"v_cmp_ne_u32 vcc, s{t0}, v25")
        if DEVTO:
            a(f"s_add_u32 s{t1}, s{t1}, 1")
            a(f"s_cmp_gt_u32 s{t1}, 20000")
            a("s_cbranch_scc1 M_PAX")
        a("s_cbranch_vccz M_PAX")
        a(f"s_sleep {SLP}")
        a("s_branch M_PA")
        a.label("M_PAX")
        a("s_mov_b64 exec, -1")
        a.label("M_PAE")
    elif AF_=='ws': poll(CTR_A,PW,base=0)
    else: poll(CTR_A,PW)
    a("s_waitcnt lgkmcnt(0)")
    a("s_barrier")
    a.stamp(86,96)
    if WB=='late':
        a(f"s_cmp_lt_u32 s2, {PW}")
        a("s_cbranch_scc1 M_NWB")
        a(f"s_cmp_eq_u32 s{sFIRST}, 0")
        a("s_cbranch_scc1 M_NWB")
        publish(a,sWV,sDBG,CTR_T,NTW,24,sWS,t0,2048,wb=True)
        a.label("M_NWB")
    OFFV=0
    a(f"v_lshlrev_b32 v1, 2, v{GAM}")
    a(f"s_lshl_b32 s3, s{sBIN}, 8")
    a(f"s_add_u32 s3, s3, {WS_OFF}")
    a(f"buffer_load_dword v{OFFV}, v1, {s(sWS,4)}, s3 offen")
    SA=20; REM=21; RC=32; A4=72
    rc=lambda i: RC+4*i
    pm=lambda i: f"s[{sPEND+2*i}:{sPEND+2*i+1}]"
    a(f"v_add_u32 v17, s{sWIN}, v{N16}")
    a(f"s_mov_b32 s3, {RECW}")
    a(f"v_cmp_gt_u32 vcc, {PW}, v{GAM}")
    a("s_waitcnt vmcnt(0)")
    a.stamp(85,96)
    a(f"v_lshrrev_b32 v{REM}, 16, v{OFFV}")
    a(f"v_and_b32 v{SA}, 0xffff, v{OFFV}")
    a(f"v_add_u32 v{SA}, v{SA}, v17")
    a(f"v_cndmask_b32 v{REM}, 0, v{REM}, vcc")
    a(f"v_mul_u32_u24 v{SA}, 12, v{SA}")
    a(f"v_mad_u32_u24 v{SA}, v{GAM}, s3, v{SA}")
    a(f"v_sub_u32 v{REM}, v{REM}, v17")
    a(f"s_cmp_eq_u32 s{sNEW}, 0")
    a("s_cbranch_scc1 M_OLDWIN")
    for c in range(NCH):
        if 16*c<=64: a(f"v_cmp_lt_i32 {pm(c)}, {16*c}, v{REM}")
        else:
            a(f"v_cmp_lt_i32 vcc, {16*c}, v{REM}")
            a(f"s_mov_b64 {pm(c)}, vcc")
    a(f"v_cmp_lt_i32 vcc, {WIN}, v{REM}")
    a("s_cmp_lg_u64 vcc, 0")
    a(f"s_cselect_b32 s{sMORE}, 2, 0")
    a.label("M_OLDWIN")
    a(f"s_mov_b32 s3, {WS_REC}")
    def each_slot(body, tag):
        for i in range(NCH):
            L=a.newlabel(tag)
            a(f"s_mov_b64 exec, {pm(i)}")
            a(f"s_cbranch_execz {L}")
            body(i)
            a.label(L)
        a("s_mov_b64 exec, -1")
    each_slot(lambda i: a(f"buffer_load_dwordx3 {v(rc(i),3)}, v{SA}, {s(sWS,4)}, s3 offen offset:{192*i}"), "M_LD")
    poll(CTR_T,NTW,15,base=(2048 if AF_=='ws' else None))
    a(f"s_waitcnt vmcnt(0)")
    a.stamp(87,96)
    def rank(i):
        a(f"v_lshrrev_b32 v{A4+i}, 16, v{rc(i)+2}")
        a(f"v_min_u32 v{A4+i}, {(NB-1)*4}, v{A4+i}")
        a(f"v_and_b32 v{A4+i}, -4, v{A4+i}")
        a(f"ds_add_rtn_u32 v{rc(i)+3}, v{A4+i}, v16 offset:{CNTL}")
    each_slot(rank,"M_RK")
    for r in range(4):
        a(f"v_lshlrev_b32 v{WV+r}, 16, v{WRAW+r}")
        a(f"v_and_b32 v{WV+4+r}, 0xffff0000, v{WRAW+r}")
    for r in range(4):
        a(f"v_lshlrev_b32 v{24+r}, 16, v{WRAW+4+r}")
        a(f"v_and_b32 v{28+r}, 0xffff0000, v{WRAW+4+r}")
    for r in range(8): a(f"v_mul_f32 v{24+r}, 0x3e800000, v{24+r}")
    for k in range(4): a(f"v_cvt_pk_bf16_f32 v{WR+k}, v{24+2*k}, v{25+2*k}")
    for r in list(range(0,16))+list(range(20,32)): a(f"v_mov_b32 v{r}, 0")
    a("s_waitcnt lgkmcnt(0)")
    def place(i):
        a(f"v_cmp_gt_u32 vcc, {32*33}, v{rc(i)+3}")
        a(f"v_bfe_u32 v18, v{rc(i)+3}, 4, 5")
        a(f"v_mul_u32_u24 v19, 17, v{A4+i}")
        a(f"s_andn2_b64 {pm(i)}, exec, vcc")
        a(f"v_lshl_add_u32 v19, v18, 1, v19")
        a(f"v_lshlrev_b32 v18, 2, v19")
        a(f"s_mov_b64 exec, vcc")
        a(f"ds_write_b64 v18, {v(rc(i),2)} offset:{RECL}")
        a(f"ds_write_b16 v19, v{rc(i)+2} offset:{LAL}")
    each_slot(place,"M_PL")
    a("s_waitcnt lgkmcnt(0)")
    a("s_barrier")
    a.stamp(88,96)
    a(f"s_lshl_b32 s3, s{sWV}, 3")
    a(f"v_mov_b32 v{LWA}, s3")
    a(f"ds_read_b32 v{LWA}, v{LWA} offset:{CNTL}")
    a(f"s_mul_i32 s3, s{sWV}, {2*272}")
    a(f"v_add_u32 v{LWP}, s3, v{PSRC}")
    a(f"ds_read_u16 v{SRCW}, v{LWP} offset:{RECL+6}")
    for r in range(16,20): a(f"v_mov_b32 v{r}, 0")
    a("s_waitcnt lgkmcnt(0)")
    a(f"v_readfirstlane_b32 s{xCnt}, v{LWA}")
    a(f"v_lshlrev_b32 v{SRCW}, 8, v{SRCW}")
    for i in range(8):
        a(f"s_cmp_le_u32 s{xCnt}, {4*i*33}")
        a("s_cbranch_scc1 M_FG")
        ta=(LWA,LWP)[i&1]
        a(f"v_add_u32_dpp v{ta}, v{SRCW}, v{C16} row_newbcast:{i} row_mask:0xf bank_mask:0xf")
        if 'nog' not in EXP: a(f"buffer_load_dwordx4 {v(G+4*i,4)}, v{ta}, {s(sT,4)}, 0 offen")
    a.label("M_FG")
    a(f"s_cmp_ge_u32 s{sWV}, 4")
    a("s_cbranch_scc1 M_NOALLOC")
    a(f"v_lshlrev_b32 v82, 2, v{TID}")
    a(f"v_cmp_gt_u32 vcc, {NB}, v{TID}")
    a("s_mov_b64 exec, vcc")
    a(f"ds_read_b32 v84, v82 offset:{CNTL}")
    a(f"v_mov_b32 v85, {POOL}")
    a(f"v_mov_b32 v86, {POOLC}")
    a("v_mov_b32 v87, 1")
    a(f"s_sub_u32 s3, {N}, s{sN0}")
    a(f"v_cmp_gt_u32 vcc, s3, v{TID}")
    a(f"v_mov_b32 v88, {4<<8}")
    a(f"v_mov_b32 v118, {5<<8}")
    a(f"v_cndmask_b32 v88, v88, v118, vcc")
    a(f"v_or_b32 v88, v88, v{TID}")
    a("s_waitcnt lgkmcnt(0)")
    a(f"v_min_u32 v84, {64*33}, v84")
    a("v_mul_u32_u24 v84, 1986, v84")
    a("v_lshrrev_b32 v84, 16, v84")
    a("v_cmp_lt_u32 vcc, 32, v84")
    a("s_and_saveexec_b64 s[0:1], vcc")
    a("ds_add_rtn_u32 v85, v86, v87")
    a("s_mov_b64 exec, s[0:1]")
    a(f"s_mul_i32 s3, s{sQ}, {NQ}")
    a(f"v_subrev_u32 v118, s3, v{TID}")
    a("s_waitcnt lgkmcnt(0)")
    a(f"v_cmp_gt_u32 vcc, {POOL}, v85")
    a(f"v_add_u32 v85, {NB}, v85")
    a("v_min_u32 v86, 64, v84")
    a("v_lshl_or_b32 v86, v85, 7, v86")
    a("v_min_u32 v84, 32, v84")
    a("v_cndmask_b32 v84, v84, v86, vcc")
    a("v_lshl_or_b32 v84, v88, 16, v84")
    a(f"ds_write_b32 v82, v84 offset:{TTL}")
    a(f"v_cmp_gt_u32 vcc, {NQ}, v118")
    a(f"v_or_b32 v84, {1<<25}, v84")
    a("v_lshlrev_b32 v118, 3, v118")
    a("s_and_b64 exec, exec, vcc")
    a(f"ds_write_b32 v118, v84 offset:{TTL+8*NVU}")
    a("s_mov_b64 exec, -1")
    a("s_waitcnt lgkmcnt(0)")
    a.label("M_NOALLOC")
    a("s_barrier")
    a(f"s_lshl_b32 s3, s{sWV}, 3")
    a(f"v_mov_b32 v85, s3")
    a(f"ds_read_b64 v[86:87], v85 offset:{TTL}")
    a(f"s_movk_i32 s{t2}, 68")
    each_slot(lambda i: a(f"ds_read_b32 v{A4+i}, v{A4+i} offset:{TTL}"),"M_P1")
    a("s_waitcnt lgkmcnt(0)")
    def place2(i):
        a(f"v_and_b32 v84, 0x7f, v{A4+i}")
        a("v_mul_u32_u24 v84, 33, v84")
        a(f"v_cmp_lt_u32 vcc, v{rc(i)+3}, v84")
        a(f"v_subrev_u32 v82, {32*33}, v{rc(i)+3}")
        a(f"v_bfe_u32 v82, v82, 4, 5")
        a(f"v_bfe_u32 v84, v{A4+i}, 7, 9")
        a(f"s_andn2_b64 {pm(i)}, exec, vcc")
        a(f"v_mul_u32_u24 v84, s{t2}, v84")
        a(f"v_lshl_add_u32 v84, v82, 1, v84")
        a(f"v_lshlrev_b32 v82, 2, v84")
        a("s_mov_b64 exec, vcc")
        a(f"ds_write_b64 v82, {v(rc(i),2)} offset:{RECL}")
        a(f"ds_write_b16 v84, v{rc(i)+2} offset:{LAL}")
    each_slot(place2,"M_P2")
    a(f"v_readfirstlane_b32 s{sWA}, v86")
    a(f"v_readfirstlane_b32 s{sWB}, v87")
    a(f"s_or_b64 s[0:1], {pm(0)}, {pm(1)}")
    for i in range(2,NCH): a(f"s_or_b64 s[0:1], s[0:1], {pm(i)}")
    a("s_cselect_b32 s3, 1, 0")
    a(f"s_or_b32 s3, s3, s{sMORE}")
    a(f"v_mov_b32 v84, {FLAGL}")
    a("s_cbranch_scc0 M_NOFLAG")
    a("v_mov_b32 v82, s3")
    a("ds_or_b32 v84, v82")
    a.label("M_NOFLAG")
    a.stamp(92,96)
    a(f"s_waitcnt lgkmcnt(0)")
    a("s_barrier")
    a.stamp(89,96)
    a(f"ds_read_b32 v{LWA}, v84")
    for r in list(range(32,64))+list(range(A,A+8)): a(f"v_mov_b32 v{r}, 0")
    a(f"s_mov_b32 s{sP2}, 0")
    a(f"s_mov_b32 s{sNEED}, 0")
    a(f"s_mov_b32 s{sEND}, 0")
    a("s_waitcnt lgkmcnt(0)")
    a(f"v_readfirstlane_b32 s{sFLAG}, v{LWA}")
    a(f"s_xor_b32 s{sSLOW}, s{sFIRST}, 1")
    a(f"s_or_b32 s{sSLOW}, s{sSLOW}, s{sFLAG}")

    def next_desc():
        L2=a.newlabel("M_ND2"); LE=a.newlabel("M_NDE"); LC=a.newlabel("M_NDC")
        a(f"s_cmp_lg_u32 s{sP2}, 0")
        a(f"s_cbranch_scc1 {L2}")
        a(f"s_bfe_u32 s{nNode}, s{sWA}, 0x80010")
        a(f"s_mov_b32 s{nBlk}, s{nNode}")
        a(f"s_and_b32 s{nCnt}, s{sWA}, 0x7f")
        a(f"s_lshr_b32 s{nFl}, s{sWA}, 24")
        a(f"s_cmp_gt_u32 s{nCnt}, 32")
        a(f"s_cselect_b32 s{sP2}, s{sWA}, 0")
        a(f"s_cselect_b32 s{t0}, {1<<F_FIRST}, {(1<<F_FIRST)|(1<<F_LAST)}")
        a(f"s_or_b32 s{nFl}, s{nFl}, s{t0}")
        a(f"s_min_u32 s{nCnt}, s{nCnt}, 32")
        a(f"s_mov_b32 s{sWA}, s{sWB}")
        a(f"s_mov_b32 s{sWB}, 0")
        a(f"s_or_b32 s{t0}, s{sWA}, s{sEND}")
        a(f"s_cbranch_scc1 {LE}")
        a(f"s_mov_b32 s{sNEED}, 1")
        a(f"v_mov_b32 v{TA}, {CLAIML}")
        a(f"v_mov_b32 v{TA2}, 8")
        a("s_mov_b64 exec, 1")
        a(f"ds_add_rtn_u32 v{CLM}, v{TA}, v{TA2}")
        a("s_mov_b64 exec, -1")
        a(f"s_branch {LE}")
        a.label(L2)
        a(f"s_bfe_u32 s{nBlk}, s{sP2}, 0x90007")
        a(f"s_and_b32 s{nCnt}, s{sP2}, 0x7f")
        a(f"s_sub_u32 s{nCnt}, s{nCnt}, 32")
        a(f"s_lshr_b32 s{nFl}, s{sP2}, 24")
        a(f"s_or_b32 s{nFl}, s{nFl}, {1<<F_LAST}")
        a(f"s_mov_b32 s{sP2}, 0")
        a.label(LE)
    def claim_top():
        L=a.newlabel("M_CT")
        a(f"s_cmp_eq_u32 s{sNEED}, 0")
        a(f"s_cbranch_scc1 {L}")
        a("s_waitcnt lgkmcnt(0)")
        a("s_mov_b64 exec, 1")
        a(f"ds_read_b32 v{TA}, v{CLM} offset:{TTL+128}")
        a(f"ds_read_b32 v{TA2}, v{CLM} offset:{TTL+132}")
        a("s_mov_b64 exec, -1")
        a.label(L)
    def claim_mid():
        L=a.newlabel("M_CM")
        a(f"s_cmp_eq_u32 s{sNEED}, 0")
        a(f"s_cbranch_scc1 {L}")
        a(f"v_readfirstlane_b32 s{sWA}, v{TA}")
        a(f"v_readfirstlane_b32 s{sWB}, v{TA2}")
        a(f"s_mov_b32 s{sNEED}, 0")
        a(f"s_cmp_eq_u32 s{sWA}, 0")
        a(f"s_cselect_b32 s{sEND}, 1, 0")
        a.label(L)
    def raw_reads(full):
        a(f"s_mul_i32 s{t0}, s{nBlk}, 68")
        a(f"s_lshl_b32 s{t1}, s{t0}, 2")
        a(f"v_add_u32 v{TA}, s{t0}, v{PLA}")
        a(f"ds_read_b32 v{LWA}, v{TA} offset:{LAL}")
        a(f"v_add_u32 v{TA2}, s{t1}, v{PSRC}")
        a(f"ds_read_u16 v{SRCW}, v{TA2} offset:{RECL+6}")
        if full:
            a(f"v_add_u32 v{TA}, s{t0}, v{PLAP}")
            a(f"ds_read_b32 v{LWP}, v{TA} offset:{LAL}")
    def rotate():
        a(f"s_mov_b32 s{cCnt}, s{xCnt}"); a(f"s_mov_b64 s[{cNode}:{cFl}], s[{xNode}:{xFl}]")
        a(f"s_mov_b64 s[{xBlk}:{xCnt}], s[{nBlk}:{nCnt}]"); a(f"s_mov_b64 s[{xNode}:{xFl}], s[{nNode}:{nFl}]")
    def gathers():
        LE=a.newlabel("M_GE"); LS=a.newlabel("M_GS"); LB=a.newlabel("M_GB")
        def one(i):
            ta = TA if i%2==0 else TA2
            a(f"v_add_u32_dpp v{ta}, v{SRCW}, v{C16} row_newbcast:{i} row_mask:0xf bank_mask:0xf")
            if 'nog' not in EXP: a(f"buffer_load_dwordx4 {v(G+4*i,4)}, v{ta}, {s(sT,4)}, 0 offen")
        a(f"s_cmp_le_u32 s{xCnt}, 12")
        a(f"s_cbranch_scc1 {LS}")
        for i in range(4): one(i)
        for i in range(4,8):
            a(f"s_cmp_le_u32 s{xCnt}, {4*i}")
            a(f"s_cbranch_scc1 {LE}")
            one(i)
        a.label(LE)
        def cold():
            a.label(LS)
            for i in range(3):
                a(f"s_cmp_le_u32 s{xCnt}, {4*i}")
                a(f"s_cbranch_scc1 {LE}")
                one(i)
            a(f"s_branch {LE}")
        return cold
    def gat(i):
        L=a.newlabel("M_G1")
        ta = TA if i%2==0 else TA2
        a(f"s_cmp_le_u32 s{xCnt}, {4*i}")
        a(f"s_cbranch_scc1 {L}")
        a(f"v_add_u32_dpp v{ta}, v{SRCW}, v{C16} row_newbcast:{i} row_mask:0xf bank_mask:0xf")
        if 'nog' not in EXP: a(f"buffer_load_dwordx4 {v(G+4*i,4)}, v{ta}, {s(sT,4)}, 0 offen")
        a.label(L)
    def node_off(dst, node, sub=0):
        a(f"s_add_u32 s{dst}, s{sN0}, s{node}")
        if sub: a(f"s_sub_u32 s{dst}, s{dst}, {sub}")
        a(f"s_min_u32 s{dst}, s{dst}, {N-2}")
        a(f"s_lshl_b32 s{dst}, s{dst}, 10")
    def sv_loadV(node):
        node_off(t2,node)
        if 'wide' in EXP:
            a(f"buffer_load_dwordx2 {v(SVD,2)}, v{VO1}, {s(sSV,4)}, s{t2} offen"); return
        a(f"buffer_load_dword v{SVD}, v{VO1}, {s(sSV,4)}, s{t2} offen")
        a(f"buffer_load_short_d16_hi v{SVS}, v{VO2}, {s(sSV,4)}, s{t2} offen")
    def carry(Zs, kind, sub, Lback, tail):
        LC=a.newlabel("M_NOC")
        a(f"v_mbcnt_lo_u32_b32 v{TA}, -1, 0")
        a(f"v_mbcnt_hi_u32_b32 v{TA}, -1, v{TA}")
        a(f"v_lshlrev_b32 v{TA}, 2, v{TA}")
        a(f"s_mul_i32 s{t2}, s2, {CARRY_WG}")
        a(f"s_lshl_b32 s{t3}, s{cNode}, 9")
        a(f"s_add_u32 s{t2}, s{t2}, s{t3}")
        a(f"s_add_u32 s{t2}, s{t2}, {WS_CARRY+kind*NB*512-sub*512}")
        a(f"s_cmp_lg_u32 s{sFIRST}, 0")
        a(f"s_cbranch_scc1 {LC}")
        for i,z in enumerate(Zs):
            a(f"buffer_load_dword v{TA2}, v{TA}, {s(sWS,4)}, s{t2} offen offset:{256*i} sc1")
            a("s_waitcnt vmcnt(0)")
            a(f"v_add_f32 v{z}, v{z}, v{TA2}")
        a.label(LC)
        a(f"s_cmp_eq_u32 s{sFLAG}, 0")
        a(f"s_cbranch_scc1 {Lback}")
        for i,z in enumerate(Zs):
            a(f"buffer_store_dword v{z}, v{TA}, {s(sWS,4)}, s{t2} offen offset:{256*i} sc1")
        tail()

    PROF = a.stamps and 'prof' in EXP
    def tick(acc):
        if not PROF: return
        a("s_memtime s[96:97]"); a("s_waitcnt lgkmcnt(0)")
        a("s_sub_u32 s97, s96, s56"); a("s_mov_b32 s56, s96")
        a(f"s_add_u32 s{acc}, s{acc}, s97")
    if PROF:
        for r in (57,58,59,99,100,101): a(f"s_mov_b32 s{r}, 0")
        a("s_memtime s[96:97]"); a("s_waitcnt lgkmcnt(0)"); a("s_mov_b32 s56, s96")
    next_desc()
    raw_reads(True)
    sv_loadV(nNode)
    a(f"s_mov_b32 s{xCnt}, 0"); a(f"s_mov_b32 s{xNode}, 0"); a(f"s_mov_b32 s{xFl}, {(1<<F_FIRST)|(1<<F_LAST)}")
    rotate()
    a.stamp(90,96)
    if a.stamps:
        a("s_memtime s[96:97]"); a("s_waitcnt lgkmcnt(0)"); a("s_mov_b32 s95, s96")
    a("s_waitcnt lgkmcnt(0)")
    a("s_branch VB_POST")
    colds=[]
    def vexit(L):
        a(f"s_and_b32 s{t0}, s{cFl}, {(1<<F_S)|(1<<F_EX)}")
        a(f"s_cmp_eq_u32 s{t0}, {1<<F_EX}")
        a(f"s_cbranch_scc1 {L}")
        a("s_branch S_START")
    for cp,X,PT in (("A",XA,(XB+3,XB+7)),("B",XB,(XA+3,XA+7))):
        if cp=="A":
            a.label("VA_TOP0")
            a("s_waitcnt vmcnt(0)")
            a.label("VA_TOP")
            claim_top()
            tick(59)
            a(f"s_waitcnt vmcnt({2 if 'wide' in EXP else 4}) lgkmcnt(0)")
            tick(57)
        else:
            a.label("VB_TOP0")
            claim_top()
            tick(59)
            a("s_waitcnt vmcnt(0)")
            tick(58)
            a.label("VB_MID")
            a("s_waitcnt lgkmcnt(0)")
        a(f"v_lshlrev_b32 v{SRCW}, 8, v{SRCW}")
        claim_mid()
        if cp=="B":
            a(f"s_bitcmp1_b32 s{xFl}, {F_S}")
            a(f"s_cselect_b32 s{sT}, s{sSB}, s{sT}")
            a(f"s_cselect_b32 s{sT+1}, s{sSB+1}, s{sT+1}")
        for p in range(4):
            LP=a.newlabel("V_NP")
            if p>0:
                a(f"s_cmp_le_u32 s{cCnt}, {8*p}")
                a(f"s_cbranch_scc1 {LP}")
            Ga,Gb=G+8*p,G+8*p+4
            h=p>>1; r=(2*p)&3
            d0=DW+(2*h)*4+r; d1=DW+(2*h+1)*4+r
            pr=[]
            for j in range(3):
                pr.append(f"v_perm_b32 v{F+(2*j)*4+p}, v{Gb+j}, v{Ga+j}, s{sLO}")
                pr.append(f"v_perm_b32 v{F+(2*j+1)*4+p}, v{Gb+j}, v{Ga+j}, s{sHI}")
            a(f"v_mul_f32 v{d1}, v{d1}, v{Ga+3}"); a(pr[0])
            a(f"v_mul_f32 v{d1+1}, v{d1+1}, v{Gb+3}"); a(pr[1])
            a(f"v_lshlrev_b32 v{Ga+3}, 16, v{Ga+3}")
            a(f"v_lshlrev_b32 v{Gb+3}, 16, v{Gb+3}")
            a(pr[2])
            if p>0 and GI==2: gat(2*p-1)
            a(f"v_mul_f32 v{d0}, v{d0}, v{Ga+3}"); a(pr[3])
            a(f"v_mul_f32 v{d0+1}, v{d0+1}, v{Gb+3}"); a(pr[4])
            a(f"v_cvt_pk_bf16_f32 v{Y+4+p}, v{d1}, v{d1+1}")
            a(pr[5])
            a(f"v_cvt_pk_bf16_f32 v{Y+p}, v{d0}, v{d0+1}")
            if GI==2 and p>0:
                LQ=a.newlabel("V_NQ")
                a(f"s_branch {LQ}")
                a.label(LP)
                gat(2*p-1)
                a.label(LQ)
            else: a.label(LP)
            gat(2*p)
            if GI==1 or p==3: gat(2*p+1)
        if cp=="B": a.label("VB_POST")
        tick(99)
        a(f"s_bitcmp1_b32 s{cFl}, {F_FIRST}")
        a(f"s_cbranch_scc0 V{cp}_ACC")
        for t in range(2): a(f"v_mfma_f32_16x16x32_bf16 {v(X+4*t,4)}, {v(R,4)}, {v(Y+4*t,4)}, 0")
        a.label(f"V{cp}_ACCB")
        def acc(cp=cp,X=X):
            a.label(f"V{cp}_ACC")
            for t in range(2): a(f"v_mfma_f32_16x16x32_bf16 {v(X+4*t,4)}, {v(R,4)}, {v(Y+4*t,4)}, {v(X+4*t,4)}")
            a(f"s_branch V{cp}_ACCB")
        colds.append(acc)
        def MD(k): a(f"v_mfma_f32_16x16x32_bf16 {v(DW+4*(k&3),4)}, {v(A,4)}, {v(F+4*k,4)}, 0")
        def post(k):
            j,t=k>>1,k&1
            for r in range(4): a(f"v_fmac_f32 v{X+4*t+j}, v{DW+4*(k&3)+r}, v{WV+4*t+r}")
        MD(0)
        a(f"v_add_u32_sdwa v{PT[0]}, v{LWP}, v{C8P} {SD} src0_sel:WORD_0 src1_sel:DWORD")
        MD(1)
        a(f"v_add_u32_sdwa v{PT[1]}, v{LWP}, v{C8P} {SD} src0_sel:WORD_1 src1_sel:DWORD")
        MD(2)
        a(f"ds_read_b64 {v(R,2)}, v{PT[0]}")
        a(f"ds_read_b64 {v(R+2,2)}, v{PT[1]}")
        MD(3)
        a(f"v_add_u32_sdwa v{PT[0]}, v{LWA}, v{C8} {SD} src0_sel:WORD_0 src1_sel:DWORD")
        post(0); MD(4)
        a(f"v_add_u32_sdwa v{PT[1]}, v{LWA}, v{C8} {SD} src0_sel:WORD_1 src1_sel:DWORD")
        post(1); MD(5)
        a(f"ds_read_b64_tr_b16 {v(A,2)}, v{PT[0]}")
        a(f"ds_read_b64_tr_b16 {v(A+2,2)}, v{PT[1]}")
        a(f"s_mul_i32 s{t1}, s{xBlk}, 272")
        post(2); post(3)
        a("s_waitcnt lgkmcnt(2)")
        def MW(h,t): a(f"v_mfma_f32_16x16x16_bf16 {v(DW+(2*h+t)*4,4)}, {v(R+2*h,2)}, {v(WR+2*t,2)}, 0")
        MW(1,0); MW(1,1)
        a(f"v_lshl_add_u32 v{PT[0]}, v{PLA}, 2, s{t1}")
        post(4); MW(0,0); post(5); MW(0,1)
        a(f"ds_read_b64_tr_b16 {v(R,2)}, v{PT[0]} offset:{RECL}")
        a(f"ds_read_b64_tr_b16 {v(R+2,2)}, v{PT[0]} offset:{RECL+8}")
        tick(100)
        next_desc()
        raw_reads(True)
        if PROF: a("s_add_u32 s101, s101, 1")
        a(f"s_bitcmp1_b32 s{cFl}, {F_LAST}")
        if cp=="A":
            rotate()
            a("s_cbranch_scc0 VA_TOP0")
        else:
            a("s_cbranch_scc1 V_EPI")
            rotate()
            a("s_branch VB_TOP0")
    a.label("V_EPI")
    a(f"s_bitcmp1_b32 s{cFl}, {F_VALID}")
    a("s_cbranch_scc0 V_SKIP")
    for t in range(2):
        for j in range(3): a(f"v_permlane32_swap_b32 v{XA+4*t+j}, v{XB+4*t+j}")
    for j in range(3):
        for t in range(2): a(f"v_add_f32 v{XA+4*t+j}, v{XA+4*t+j}, v{XB+4*t+j}")
    a(f"v_permlane16_swap_b32 v{XA}, v{XA+1}")
    a(f"v_permlane16_swap_b32 v{XA+4}, v{XA+5}")
    a(f"v_permlane16_swap_b32 v{XA+2}, v{XA+6}")
    Z0,Z1,Z2=XA,XA+4,XA+2
    a(f"v_add_f32 v{Z0}, v{XA}, v{XA+1}")
    a(f"v_add_f32 v{Z1}, v{XA+4}, v{XA+5}")
    a(f"v_add_f32 v{Z2}, v{XA+2}, v{XA+6}")
    a(f"s_cmp_lg_u32 s{sSLOW}, 0")
    a("s_cbranch_scc1 V_SLOW")
    a.label("V_BACK")
    a(f"v_lshlrev_b32 v{XB}, 16, v{SVD}")
    a(f"v_and_b32 v{XB+1}, 0xffff0000, v{SVD}")
    a(f"v_add_f32 v{Z2}, v{Z2}, v{SVS}")
    a(f"v_add_f32 v{Z0}, v{Z0}, v{XB}")
    a(f"v_add_f32 v{Z1}, v{Z1}, v{XB+1}")
    node_off(t2,cNode,1)
    a(f"v_cvt_pk_bf16_f32 v{Z2}, v{Z2}, v{Z2}")
    a(f"v_cvt_pk_bf16_f32 v{Z0}, v{Z0}, v{Z1}")
    if 'wide' in EXP: a(f"buffer_store_dwordx2 {v(Z0,2)}, v{VO1}, {s(sOUT,4)}, s{t2} offen")
    else:
        a(f"buffer_store_short v{Z2}, v{VO2}, {s(sOUT,4)}, s{t2} offen")
        a(f"buffer_store_dword v{Z0}, v{VO1}, {s(sOUT,4)}, s{t2} offen")
    sv_loadV(xNode)
    rotate()
    vexit("VA_TOP")
    a.label("V_SLOW")
    a_skip=lambda: None
    carry([Z0,Z1,Z2],0,1,"V_BACK",a_skip)
    a.label("V_SKIP")
    rotate()
    vexit("VA_TOP0")
    for c in colds: c()
    colds=[]
    FS=32; WS_=64
    WSR=[64+i for i in range(16)]+[80,81,82,84,85,86,88,89,90,92,93,94]+[96,97,98,99]
    CAR=[100,101,102,103,104,105,106,107]
    def sv_loadS(node):
        a(f"s_add_u32 s{t2}, s{sN0}, s{node}")
        a(f"s_min_u32 s{t2}, s{t2}, {N-1}")
        a(f"s_lshl_b32 s{t2}, s{t2}, 10")
        a(f"buffer_load_dword v{SVD}, v{VO1}, {s(sSV,4)}, s{t2} offen")
    a.label("S_START")
    a.stamp(91,96)
    a(f"s_bitcmp1_b32 s{cFl}, {F_EX}")
    a("s_cbranch_scc0 M_DONE")
    a(f"v_mbcnt_lo_u32_b32 v{VO2}, -1, 0")
    a(f"v_mbcnt_hi_u32_b32 v{VO2}, -1, v{VO2}")
    a(f"v_lshrrev_b32 v{VO2}, 4, v{VO2}")
    a(f"v_lshl_add_u32 v{VO1}, v{VO2}, 2, v{C16}")
    if 'lin' in EXP:
        a(f"v_lshrrev_b32 v{VO1}, 2, v{C16}")
        a(f"v_lshl_add_u32 v{VO1}, v{VO2}, 6, v{VO1}")
    a(f"v_mul_u32_u24 v{VO2}, {4*768}, v{VO2}")
    a(f"v_add_u32 v{VO2}, v{VO2}, v{C16}")
    for r in range(4):
        a(f"buffer_load_dwordx4 {v(FS+4*r,4)}, v{VO2}, {s(sWR,4)}, 0 offen offset:{768*r}")
    sv_loadS(cNode)
    a("s_waitcnt vmcnt(1)")
    for r in range(4):
        for d in range(4):
            a(f"v_lshlrev_b32 v{WSR[(2*d)*4+r]}, 16, v{FS+4*r+d}")
            a(f"v_and_b32 v{WSR[(2*d+1)*4+r]}, 0xffff0000, v{FS+4*r+d}")
    a.label("S_TOP0")
    a("s_waitcnt vmcnt(0)")
    a.label("S_TOP")
    claim_top()
    a("s_waitcnt vmcnt(1) lgkmcnt(0)")
    a(f"v_lshlrev_b32 v{SRCW}, 8, v{SRCW}")
    a(f"v_mov_b32 v{SVS}, v{SVD}")
    claim_mid()
    L=a.newlabel("S_NSV")
    a(f"s_bitcmp1_b32 s{xFl}, {F_FIRST}")
    a(f"s_cbranch_scc0 {L}")
    sv_loadS(xNode)
    a.label(L)
    for p in range(4):
        Ga,Gb=G+8*p,G+8*p+4
        for d in range(4):
            a(f"v_perm_b32 v{FS+(2*d)*4+p}, v{Gb+d}, v{Ga+d}, s{sLO}")
            a(f"v_perm_b32 v{FS+(2*d+1)*4+p}, v{Gb+d}, v{Ga+d}, s{sHI}")
        gat(2*p); gat(2*p+1)
    for k in range(8):
        a(f"v_mfma_f32_16x16x32_bf16 {v(FS+4*k,4)}, {v(A,4)}, {v(FS+4*k,4)}, 0")
        if k==2: a(f"v_add_u32_sdwa v{TA}, v{LWA}, v{C8} {SD} src0_sel:WORD_0 src1_sel:DWORD")
        if k==4: a(f"v_add_u32_sdwa v{TA2}, v{LWA}, v{C8} {SD} src0_sel:WORD_1 src1_sel:DWORD")
    a(f"ds_read_b64_tr_b16 {v(A,2)}, v{TA}")
    a(f"ds_read_b64_tr_b16 {v(A+2,2)}, v{TA2}")
    next_desc()
    raw_reads(False)
    for k in range(8):
        a(f"v_mul_f32 v{FS+4*k}, v{FS+4*k}, v{WSR[4*k]}")
        for r in range(1,4): a(f"v_fmac_f32 v{FS+4*k}, v{FS+4*k+r}, v{WSR[4*k+r]}")
    a(f"s_bitcmp1_b32 s{cFl}, {F_FIRST}")
    a("s_cbranch_scc1 S_NOCAR")
    for k in range(8): a(f"v_add_f32 v{FS+4*k}, v{FS+4*k}, v{CAR[k]}")
    a.label("S_NOCAR")
    def sexit(L):
        a(f"s_bitcmp1_b32 s{cFl}, {F_EX}")
        a(f"s_cbranch_scc1 {L}")
        a("s_branch M_DONE")
    a(f"s_and_b32 s{t0}, s{cFl}, {(1<<F_LAST)|(1<<F_VALID)}")
    a(f"s_cmp_eq_u32 s{t0}, {(1<<F_LAST)|(1<<F_VALID)}")
    a("s_cbranch_scc1 S_EPI")
    for k in range(8): a(f"v_mov_b32 v{CAR[k]}, v{FS+4*k}")
    a.label("S_SKIP")
    rotate()
    sexit("S_TOP0")
    a.label("S_EPI")
    ac=lambda k: FS+4*k
    for k in range(4): a(f"v_permlane32_swap_b32 v{ac(k)}, v{ac(k+4)}")
    for k in range(4): a(f"v_add_f32 v{ac(k)}, v{ac(k)}, v{ac(k+4)}")
    a("s_nop 0")
    a(f"v_permlane16_swap_b32 v{ac(0)}, v{ac(2)}")
    a(f"v_permlane16_swap_b32 v{ac(1)}, v{ac(3)}")
    a(f"v_add_f32 v{ac(0)}, v{ac(0)}, v{ac(2)}")
    a(f"v_add_f32 v{ac(1)}, v{ac(1)}, v{ac(3)}")
    a(f"s_cmp_lg_u32 s{sSLOW}, 0")
    a("s_cbranch_scc1 S_SLOW")
    a.label("S_BACK")
    a(f"v_lshlrev_b32 v{ac(2)}, 16, v{SVS}")
    a(f"v_and_b32 v{ac(3)}, 0xffff0000, v{SVS}")
    a(f"v_add_f32 v{ac(0)}, v{ac(0)}, v{ac(2)}")
    a(f"v_add_f32 v{ac(1)}, v{ac(1)}, v{ac(3)}")
    a(f"s_add_u32 s{t2}, s{sN0}, s{cNode}")
    a(f"s_lshl_b32 s{t2}, s{t2}, 10")
    a(f"v_cvt_pk_bf16_f32 v{ac(0)}, v{ac(0)}, v{ac(1)}")
    a(f"buffer_store_dword v{ac(0)}, v{VO1}, {s(sOUT,4)}, s{t2} offen")
    rotate()
    sexit("S_TOP")
    a.label("S_SLOW")
    carry([ac(0),ac(1)],1,0,"S_BACK",lambda: a("s_branch S_SKIP"))
    for c in colds: c()
    a.label("M_DONE")
    if a.stamps:
        a.stamp(93,96)
        a("s_memtime s[96:97]"); a("s_waitcnt lgkmcnt(0)"); a("s_mov_b32 s98, s96")
        a("s_waitcnt vmcnt(0)")
        a.stamp(94,96)
        a(f"s_lshl_b32 s3, s2, 4"); a(f"s_add_u32 s3, s3, s{sWV}")
        if os.environ.get('DBGST'):
            a(f"s_cmp_lg_u32 s3, {200*16}")
            a("s_cbranch_scc1 M_NDB")
            a("s_mov_b32 s3, 0")
            a("s_sub_u32 s98, s98, s95")
            for r in (86,85,87,88,89,90,91,93,94,84): a(f"s_sub_u32 s{r}, s{r}, s99")
            a.dump_stamps([99,84,86,85,87,88,89,90,91,93,94,98],sDBG,4,3,0,3)
            a.label("M_NDB")
        else: a.dump_stamps([84,57,58,59,99,100,90,91,101,93,94,95,98] if PROF else [84,86,85,87,88,89,90,91,92,93,94,95,98],sWS,WS_CARRY,3,0,3)
        a("s_mov_b64 exec, -1")
    a(f"s_cmp_eq_u32 s{sFLAG}, 0")
    a("s_cbranch_scc1 M_END")
    a("s_waitcnt vmcnt(0) lgkmcnt(0)")
    a("s_barrier")
    a(f"s_mov_b32 s{sFIRST}, 0")
    a(f"s_bitcmp1_b32 s{sFLAG}, 0")
    a(f"s_cselect_b32 s{sNEW}, 0, 1")
    a(f"s_cselect_b32 s3, 0, {WIN}")
    a(f"s_add_u32 s{sWIN}, s{sWIN}, s3")
    a("s_branch M_ROUND")
    a.label("M_END")
    a("s_endpgm")
```
